```python
import torch

def _softmax(x, axis=-1):
    return torch.softmax(x, dim=axis)
def _gelu(x):
    return torch.nn.functional.gelu(x, approximate="tanh")
def _silu(x):
    return torch.nn.functional.silu(x)
def _sigmoid(x):
    return torch.sigmoid(x)
def _layernorm(x, axis=-1, eps=1e-5):
    m = x.mean(dim=axis, keepdim=True)
    v = x.var(dim=axis, keepdim=True, unbiased=False)
    return (x - m) / torch.sqrt(v + eps)
def _scatter_add(tgt, idx, src, axis=0):
    return tgt.clone().index_add_(axis, idx, src)
def _segment_sum(src, seg, n):
    out = torch.zeros((n,) + src.shape[1:], dtype=src.dtype)
    return out.index_add_(0, seg, src)
def _pad(x, pw):
    flat = tuple(v for pair in reversed(pw) for v in pair)
    return torch.nn.functional.pad(x, flat)

kernel_name = 'interleave_layers__mha_block_cached__dense_activation_silu__decode'

def setup_inputs():

    _w = (lambda a: (lambda t: t.to(torch.bfloat16) if t.is_floating_point() else t)(torch.as_tensor(a)))
    def _A_setup():
        B, Sq, D = 1, 1, 640
        H, Sk, Dh = 32, 32768, 192
        return {
            "x": _w((lambda *s: torch.randn(*s, dtype=torch.bfloat16) * 0.1)(B, Sq, D)),
            "k_cache": _w((lambda *s: torch.randn(*s, dtype=torch.bfloat16) * 1.6)(B, H, Sk, Dh)),
            "v_cache": _w((lambda *s: torch.randn(*s, dtype=torch.bfloat16) * 1.6)(B, H, Sk, Dh)),
            "wq": _w((lambda *s: torch.randn(*s, dtype=torch.bfloat16) * 1.6)(D, H * Dh) * (D ** -0.5)),
            "wo": _w((lambda *s: torch.randn(*s, dtype=torch.bfloat16) * 1.6)(H * Dh, D) * ((H * Dh) ** -0.5)),
        }
    _A_in = _A_setup()

    def _B_setup():
        B, S, D, F = 1, 1, 640, 1536
        return {
            "x": _w((lambda *s: torch.randn(*s, dtype=torch.bfloat16) * 0.1)(B, S, D)),
            "w1": _w((lambda *s: torch.randn(*s, dtype=torch.bfloat16) * 0.8)(D, F) * (D ** -0.5)),
            "w2": _w((lambda *s: torch.randn(*s, dtype=torch.bfloat16) * 0.8)(F, D) * (F ** -0.5)),
        }
    _B_in = _B_setup()

    return {
        "A_x": _A_in["x"],
        "A_k_cache": _A_in["k_cache"],
        "A_v_cache": _A_in["v_cache"],
        "A_wq": _A_in["wq"],
        "A_wo": _A_in["wo"],
        "B_x": _B_in["x"],
        "B_w1": _B_in["w1"],
        "B_w2": _B_in["w2"],
    }

def reference(A_x, A_k_cache, A_v_cache, A_wq, A_wo, B_x, B_w1, B_w2):
    def _A_ref(x, k_cache, v_cache, wq, wo):
        B, Sq, D = x.shape
        H, Dh = 32, 192
        q = (lambda x, *d: x.permute(*d))((x @ wq).reshape(B, Sq, H, Dh), 0, 2, 1, 3)
        scores = torch.einsum("bhqd,bhkd->bhqk", q, k_cache) * (Dh ** -0.5)
        p = _softmax(scores, axis=-1)
        o = torch.einsum("bhqk,bhkd->bhqd", p, v_cache)
        return (lambda x, *d: x.permute(*d))(o, 0, 2, 1, 3).reshape(B, Sq, H * Dh) @ wo

    def _B_ref(x, w1, w2):
        h = torch.einsum("bsd,df->bsf", x, w1)
        h = _silu(h)
        out = torch.einsum("bsf,fd->bsd", h, w2)
        return out

    x = A_x
    x = x + _A_ref(_layernorm(x, axis=-1), A_k_cache, A_v_cache, A_wq, A_wo)
    x = x + _B_ref(_layernorm(x, axis=-1), B_w1, B_w2)
    x = x + _A_ref(_layernorm(x, axis=-1), A_k_cache, A_v_cache, A_wq, A_wo)
    x = x + _B_ref(_layernorm(x, axis=-1), B_w1, B_w2)
    return x
```

```python
import sys, ast

KN = "interleave_layers__mha_block_cached__dense_activation_silu__decode_kernel"

HEADER = """; Kernarg layout for this problem (88 bytes, ptrs only, base s[0:1]):
"""

HB = 12582912
UB = 3072
TSTRIDE = 32 * UB
NUNIT = 128
NSLOT = 19
NLDS = 5
L_UNITS = 0
L_W = 4 * NLDS * 6144
L_S = L_W + 30720
L_PART = L_S
L_ML = L_PART + 6144
L_QB = L_ML + 64
L_RED = L_QB + 384
L_HP = L_RED + 256
L_XK = L_HP + 128
L_END = L_XK + 64
LDS_BYTES = 163840
assert L_END <= LDS_BYTES
WOFF = [0, 9216, 18432, 24576]
K1 = 1024
W_QP0 = 0
W_B0 = 256 * K1
B_AP = 0
B_Y1 = 256 * K1
B_Y2 = B_Y1 + 640 * K1
B_X1 = B_Y2 + 480 * K1
B_X2 = B_X1 + 4 * K1
B_QP = B_X2 + 4 * K1
B_SIZE = B_QP + 256 * K1
W_B1 = W_B0 + B_SIZE
W_CLR = W_B0
assert W_B1 + B_X2 <= W_CLR + 3072 * K1
W_STAMP = 4096 * K1
WS_REC = 8192 * K1
NRED = 40
RED0 = 192
NFFN = 192
SCALE = 0x3d93cd3a
LOG2E = 0x3fb8aa3b
NLOG2E = 0xbfb8aa3b
INV640 = 0x3acccccd
EPS = 0x3727c5ac
SPIN = 400000

sK, sV, sWS, sWQ, sWO, sW1, sW2, sX, sOUT, sDBG = 4, 8, 12, 16, 20, 24, 28, 32, 36, 40
sH, sS, sWV = 44, 45, 46
sKOFF, sVOFF = 47, 48
sKREM, sVREM = 49, 50
sREM = 51
sM = 52
sPASS = 53
sRET = 54
sBLK = 56
sQP = 57
sWB = 58
sCNT = 59
sT0, sT1, sT2, sT3, sT4, sT5 = 60, 61, 62, 63, 64, 65
sEX = 66
sU0 = 68
sF = 70
sST = 76

vLANE, vKO, vVO, vL16 = 0, 1, 2, 3
vMK = 4
vACC = 8
vD = 20
vP = 24
vNEG, vLS = 28, 29
vT = 30
aQ = 240


def sreg(n, k=4):
    return f"s[{n}:{n+k-1}]"


def vr(n, k=4):
    return f"v[{n}:{n+k-1}]" if k > 1 else f"v{n}"


def ar(n, k=4):
    return f"a[{n}:{n+k-1}]" if k > 1 else f"a{n}"


def slot_reg(k, i):
    if k < 9:
        return vr(40 + 24 * k + 4 * i)
    return ar(24 * (k - 9) + 4 * i)


class Gen:
    def __init__(self, A=2, mapx=1, pol="nt", stamps=False, wpol="nt", p2units=(0, 1, 7, 13), rev2=False):
        self.L = []
        self.A = A
        self.mapx = mapx
        self.pol = (" " + pol) if pol else ""
        self.wpol = (" " + wpol) if wpol else ""
        self.stamps = stamps
        self.nst = 0
        self.uid = 0
        self.p2units = p2units
        self.rev2 = rev2

    def __call__(self, s):
        for line in s.strip("\n").split("\n"):
            line = line.strip()
            if line:
                self.L.append(line if line.endswith(":") else "    " + line)

    def lab(self, p="L"):
        self.uid += 1
        return f"{p}_{self.uid}"

    def stamp(self, idx):
        if self.stamps:
            assert idx < 12
            self(f"s_memrealtime s[{sST+2*idx}:{sST+2*idx+1}]")

    def dump_stamps(self):
        if not self.stamps:
            return
        self("s_waitcnt lgkmcnt(0)")
        self(f"v_mov_b32 v{vT}, 0")
        for i in range(12):
            self(f"v_writelane_b32 v{vT}, s{sST+2*i}, {i}")
        self(f"""s_getreg_b32 s{sT0}, hwreg(HW_REG_XCC_ID)
        v_writelane_b32 v{vT}, s{sT0}, 15
        s_lshl_b32 s{sT0}, s2, 2
        s_add_u32 s{sT0}, s{sT0}, s{sWV}
        s_lshl_b32 s{sT0}, s{sT0}, 1
        s_add_u32 s{sT0}, s{sT0}, s{sPASS}
        s_lshl_b32 s{sT0}, s{sT0}, 6
        s_add_u32 s{sT0}, s{sT0}, {W_STAMP}
        v_lshlrev_b32 v{vT+1}, 2, v{vLANE}
        s_mov_b64 exec, 0xffff
        buffer_store_dword v{vT}, v{vT+1}, {sreg(sWS)}, s{sT0} offen
        s_mov_b64 exec, -1
        s_waitcnt vmcnt(0)""")

    def poll(self, loads, regs, tmp):
        top, done = self.lab("L_poll"), self.lab("L_got")
        self(f"s_mov_b32 s{sCNT}, {SPIN}")
        self(f"{top}:")
        for ld in loads:
            self(ld)
        self("s_waitcnt vmcnt(0)")
        r = list(regs)
        if len(r) % 2 == 0:
            self(f"v_max_u32 v{tmp}, v{r[0]}, v{r[1]}")
            r = r[2:]
        else:
            self(f"v_max3_u32 v{tmp}, v{r[0]}, v{r[1]}, v{r[2]}")
            r = r[3:]
        while r:
            self(f"v_max3_u32 v{tmp}, v{tmp}, v{r[0]}, v{r[1]}")
            r = r[2:]
        self(f"""v_cmp_eq_u32 vcc, -1, v{tmp}
        s_cbranch_vccz {done}
        s_sub_u32 s{sCNT}, s{sCNT}, 1
        s_cbranch_scc0 {top}
        {done}:""")

    def bf16r(self, d, s):
        self(f"v_cvt_pk_bf16_f32 v{d}, v{s}, v{s}\nv_and_b32 v{d}, 0xffff0000, v{d}")

    def mkA(self, dst, src):
        for r in range(4):
            self(f"v_and_b32 v{dst+r}, v{vMK+r}, v{src}")

    def issue_group(self, slot, kv):
        srd, vo, so = (sK, vKO, sKOFF) if kv == 0 else (sV, vVO, sVOFF)
        for j in range(3):
            self(f"buffer_load_dwordx4 {slot_reg(slot, 3*kv+j)}, v{vo}, {sreg(srd)}, s{so} offen offset:{128*j}{self.pol}")
        self(f"s_add_u32 s{so}, s{so}, s{sT5}")

    def qk(self, slot):
        T = vT
        self(f"""v_mfma_f32_16x16x32_bf16 {vr(vD)}, {slot_reg(slot,0)}, {ar(aQ)}, 0
        v_mfma_f32_16x16x32_bf16 {vr(vD)}, {slot_reg(slot,1)}, {ar(aQ+4)}, {vr(vD)}
        v_mfma_f32_16x16x32_bf16 {vr(vD)}, {slot_reg(slot,2)}, {ar(aQ+8)}, {vr(vD)}
        s_nop 7
        v_add_f32_dpp v{T}, v{vD+1}, v{vD} quad_perm:[1,0,3,2] row_mask:0xf bank_mask:0x3
        s_nop 1
        v_add_f32_dpp v{T}, v{vD+3}, v{vD+2} quad_perm:[1,0,3,2] row_mask:0xf bank_mask:0xc
        s_nop 1
        v_mov_b32_dpp v{T+1}, v{T} quad_perm:[0,0,2,2] row_mask:0xf bank_mask:0xf""")
        self.bf16r(T + 1, T + 1)
        self(f"v_mul_f32 v{T+1}, {SCALE:#x}, v{T+1}")
        self.bf16r(T + 1, T + 1)
        sk = self.lab("L_nors")
        self(f"""v_cmp_lt_f32 vcc, s{sM}, v{T+1}
        s_cbranch_vccz {sk}
        s_call_b64 s[{sRET}:{sRET+1}], L_rescale
        {sk}:
        v_fmamk_f32 v{T+1}, v{T+1}, {LOG2E:#x}, v{vNEG}
        v_exp_f32 v{T+1}, v{T+1}
        s_nop 0
        v_add_f32 v{vLS}, v{vLS}, v{T+1}
        v_cvt_pk_bf16_f32 v{T+1}, v{T+1}, v{T+1}""")
        self.mkA(vP, T + 1)

    def pv(self, slot):
        for j in range(3):
            self(f"v_mfma_f32_16x16x32_bf16 {vr(vACC+4*j)}, {vr(vP)}, {slot_reg(slot,3+j)}, {vr(vACC+4*j)}")

    def rescale_sub(self):
        T = vT
        self(f"""L_rescale:
        s_nop 1
        v_max_f32_dpp v{T+2}, v{T+1}, v{T+1} row_ror:8 row_mask:0xf bank_mask:0xf
        s_nop 1
        v_max_f32_dpp v{T+2}, v{T+2}, v{T+2} row_bcast:15 row_mask:0xa bank_mask:0xf
        s_nop 1
        v_max_f32_dpp v{T+2}, v{T+2}, v{T+2} row_bcast:31 row_mask:0xc bank_mask:0xf
        s_nop 1
        v_readlane_b32 s{sM}, v{T+2}, 63
        s_nop 1
        v_mov_b32 v{T+2}, s{sM}
        v_mul_f32 v{T+2}, {NLOG2E:#x}, v{T+2}
        v_sub_f32 v{T+3}, v{T+2}, v{vNEG}
        v_exp_f32 v{T+3}, v{T+3}
        v_mov_b32 v{vNEG}, v{T+2}
        v_mul_f32 v{vLS}, v{vLS}, v{T+3}""")
        for r in range(12):
            self(f"v_mul_f32 v{vACC+r}, v{vACC+r}, v{T+3}")
        self(f"s_setpc_b64 s[{sRET}:{sRET+1}]")

    def init_softmax(self):
        for r in range(12):
            self(f"v_mov_b32 v{vACC+r}, 0")
        self(f"""v_mov_b32 v{vLS}, 0
        v_mov_b32 v{vNEG}, 0x7f800000
        s_mov_b32 s{sM}, 0xff800000""")

    def lds_unit_read(self, t, slot):
        for i in range(6):
            self(f"ds_read_b128 {slot_reg(slot,i)}, v{vT+4} offset:{t*6144 + i*1024}")

    def dma_tiles(self, srd, vaddr, tiles):
        for lo, imm in tiles:
            self(f"""s_add_u32 m0, s{sWB}, {lo}
            s_add_u32 s{sT2}, s{sT1}, {imm}
            buffer_load_dwordx4 v{vaddr}, {sreg(srd)}, s{sT2} offen{self.wpol} lds""")

    def by_nl(self, fn):
        l2, le = self.lab("L_nl2"), self.lab("L_nle")
        self(f"s_cmp_ge_u32 s{sWV}, 2\ns_cbranch_scc1 {l2}")
        fn(3)
        self(f"s_branch {le}\n{l2}:")
        fn(2)
        self(f"{le}:")

    def dma_wq(self):
        T = vT
        self(f"""v_lshrrev_b32 v{T}, 3, v{vLANE}
        v_mul_u32_u24 v{T}, 12288, v{T}
        v_and_b32 v{T+1}, 7, v{vLANE}
        v_lshl_add_u32 v{T}, v{T+1}, 4, v{T}
        s_mul_i32 s{sT1}, s{sS}, 10
        s_add_u32 s{sT1}, s{sT1}, s{sWV}
        s_mul_i32 s{sT1}, s{sT1}, {8*12288}
        s_mul_i32 s{sT2}, s{sH}, 384
        s_add_u32 s{sT1}, s{sT1}, s{sT2}""")
        self.by_nl(lambda nl: self.dma_tiles(sWQ, T, [((i*3+j)*1024, i*32*12288 + j*128) for i in range(nl) for j in range(3)]))

    def dma_wo(self):
        T = vT
        self(f"""v_lshrrev_b32 v{T}, 3, v{vLANE}
        v_mul_u32_u24 v{T}, 1280, v{T}
        v_and_b32 v{T+1}, 7, v{vLANE}
        v_lshl_add_u32 v{T}, v{T+1}, 4, v{T}
        s_mul_i32 s{sT1}, s{sH}, 24
        s_add_u32 s{sT1}, s{sT1}, s{sS}
        s_mul_i32 s{sT1}, s{sT1}, {8*1280}
        s_lshl_b32 s{sT2}, s{sWV}, 7
        s_add_u32 s{sT1}, s{sT1}, s{sT2}""")
        self.by_nl(lambda nl: self.dma_tiles(sWO, T, [((j*nl+i)*1024, j*64*1280 + i*512) for j in range(3) for i in range(nl)]))

    def dma_ffn(self):
        T = vT
        self(f"""v_mul_u32_u24 v{T}, 3072, v{vLANE}
        s_mul_i32 s{sT1}, s{sWV}, {64*3072}
        s_lshl_b32 s{sT2}, s{sT3}, 4
        s_add_u32 s{sT1}, s{sT1}, s{sT2}""")
        self.by_nl(lambda nl: self.dma_tiles(sW1, T, [(i*1024, i*256*3072) for i in range(nl)]))
        self(f"""v_lshrrev_b32 v{T}, 3, v{vLANE}
        v_mul_u32_u24 v{T}, 1280, v{T}
        v_and_b32 v{T+1}, 7, v{vLANE}
        v_lshl_add_u32 v{T}, v{T+1}, 4, v{T}
        s_mul_i32 s{sT1}, s{sT3}, {8*1280}
        s_lshl_b32 s{sT2}, s{sWV}, 7
        s_add_u32 s{sT1}, s{sT1}, s{sT2}""")
        self.by_nl(lambda nl: self.dma_tiles(sW2, T, [((nl+i)*1024, i*512) for i in range(nl)]))

    def ffn_index(self):
        self(f"""s_and_b32 s{sT3}, s2, 7
        s_mul_i32 s{sT3}, s{sT3}, 24
        s_lshr_b32 s{sT2}, s2, 3
        s_add_u32 s{sT3}, s{sT3}, s{sT2}""")

    def ln(self):
        S1, S2, T = 18, 19, 32
        self(f"v_readfirstlane_b32 s{sT0}, v8\ns_nop 1")
        self(f"v_subrev_f32 v{S1}, s{sT0}, v8\nv_mul_f32 v{S2}, v{S1}, v{S1}")
        for i in range(1, 10):
            self(f"v_subrev_f32 v{T+(i&1)}, s{sT0}, v{8+i}\nv_add_f32 v{S1}, v{S1}, v{T+(i&1)}\nv_fmac_f32 v{S2}, v{T+(i&1)}, v{T+(i&1)}")
        self("s_nop 0")
        for d in ("quad_perm:[1,0,3,2] row_mask:0xf", "quad_perm:[2,3,0,1] row_mask:0xf", "row_half_mirror row_mask:0xf",
                  "row_mirror row_mask:0xf", "row_bcast:15 row_mask:0xa", "row_bcast:31 row_mask:0xc"):
            self(f"""s_nop 0
            v_add_f32_dpp v{S1}, v{S1}, v{S1} {d} bank_mask:0xf
            v_add_f32_dpp v{S2}, v{S2}, v{S2} {d} bank_mask:0xf""")
        self(f"""s_nop 0
        v_readlane_b32 s{sT1}, v{S1}, 63
        v_readlane_b32 s{sT2}, v{S2}, 63
        v_mov_b32 v{T}, {INV640:#x}
        s_nop 0
        v_mul_f32 v{S1}, s{sT1}, v{T}
        v_mul_f32 v{S2}, s{sT2}, v{T}
        v_fma_f32 v{S2}, -v{S1}, v{S1}, v{S2}
        v_max_f32 v{S2}, 0, v{S2}
        v_add_f32 v{S1}, s{sT0}, v{S1}""")
        self.bf16r(S1, S1)
        self.bf16r(S2, S2)
        self(f"v_add_f32 v{S2}, {EPS:#x}, v{S2}")
        self.bf16r(S2, S2)
        self(f"v_sqrt_f32 v{S2}, v{S2}\ns_nop 0")
        self.bf16r(S2, S2)
        self(f"v_rcp_f32 v{S2}, v{S2}")
        for i in range(3):
            self(f"v_sub_f32 v{36+i}, v{36+i}, v{S1}")
            self.bf16r(36 + i, 36 + i)
        for i in range(3):
            self(f"v_mul_f32 v{36+i}, v{36+i}, v{S2}\nv_cvt_pk_bf16_f32 v{36+i}, v{36+i}, v{36+i}")

    def x_gather(self, xoff, mode):
        T = 32
        if mode == "ffn":
            self(f"""s_lshl_b32 s{sT0}, s{sWV}, 8
            v_lshl_add_u32 v{T}, v{vLANE}, 2, s{sT0}
            s_cmp_lt_u32 s{sWV}, 2
            s_cselect_b32 s{sT0}, 2, 1
            s_lshl_b32 s{sT0}, s{sT0}, 10""")
            o1 = 1024
        else:
            self(f"""s_mul_i32 s{sT0}, s{sS}, 10
            s_add_u32 s{sT0}, s{sT0}, s{sWV}
            s_lshl_b32 s{sT0}, s{sT0}, 5
            v_lshrrev_b32 v{T}, 3, v{vLANE}
            v_lshl_add_u32 v{T}, v{T}, 2, s{sT0}
            s_cmp_lt_u32 s{sWV}, 2
            s_cselect_b32 s{sT0}, 2, 1
            s_lshl_b32 s{sT0}, s{sT0}, 7""")
            o1 = 128
        self(f"""v_add_u32 v{T+1}, s{sT0}, v{T}
        v_lshlrev_b32 v{T+2}, 3, v{vLANE}
        s_add_u32 s{sT1}, s{sBLK}, {xoff}""")
        ws = sreg(sWS)
        self.poll([f"buffer_load_dwordx4 v[8:11], v{vL16}, {ws}, s{sT1} offen sc1",
                   f"buffer_load_dwordx4 v[12:15], v{vL16}, {ws}, s{sT1} offen offset:1024 sc1",
                   f"buffer_load_dwordx2 v[16:17], v{T+2}, {ws}, s{sT1} offen offset:2048 sc1",
                   f"buffer_load_dword v36, v{T}, {ws}, s{sT1} offen sc1",
                   f"buffer_load_dword v37, v{T}, {ws}, s{sT1} offen offset:{o1} sc1",
                   f"buffer_load_dword v38, v{T+1}, {ws}, s{sT1} offen sc1"],
                  list(range(8, 18)) + [36, 37, 38], 39)

    def part_write(self):
        T = vT
        self(f"""v_lshrrev_b32 v{T}, 5, v{vLANE}
        v_mul_u32_u24 v{T}, 768, v{T}
        v_and_b32 v{T+1}, 7, v{vLANE}
        v_lshl_add_u32 v{T}, v{T+1}, 5, v{T}
        v_and_b32 v{T+1}, 16, v{vLANE}
        v_add_u32 v{T}, v{T}, v{T+1}
        s_mul_i32 s{sT0}, s{sWV}, 1536
        s_add_u32 s{sT0}, s{sT0}, {L_PART}
        v_add_u32 v{T}, s{sT0}, v{T}
        s_mov_b32 exec_lo, 0x00ff00ff
        s_mov_b32 exec_hi, 0xff00ff00
        ds_write_b128 v{T}, {vr(vACC)}
        ds_write_b128 v{T}, {vr(vACC+4)} offset:256
        ds_write_b128 v{T}, {vr(vACC+8)} offset:512
        s_mov_b64 exec, -1""")

    def part_read(self):
        self(f"v_lshlrev_b32 v30, 2, v{vLANE}\nv_add_u32 v30, {L_PART}, v30")
        for k in range(12):
            self(f"ds_read2st64_b32 v[{8+2*k}:{9+2*k}], v30 offset0:{2*k} offset1:{2*k+1}")

    def publish_y(self, nl, yoff, P, sprod):
        T = 32
        P64 = P * 64
        self(f"""v_bfe_u32 v{T}, v{vLANE}, 1, 2
        v_lshrrev_b32 v{T+1}, 5, v{vLANE}
        v_lshl_add_u32 v{T}, v{T+1}, 4, v{T}
        v_mul_u32_u24 v{T}, {P64}, v{T}
        v_and_b32 v{T+1}, 1, v{vLANE}
        v_lshl_add_u32 v{T}, v{T+1}, 5, v{T}
        v_and_b32 v{T+1}, 16, v{vLANE}
        v_add_u32 v{T}, v{T}, v{T+1}
        s_mul_i32 s{sT0}, s{sWV}, {4*P64}
        s_lshl_b32 s{sT1}, s{sprod}, 6
        s_add_u32 s{sT0}, s{sT0}, s{sT1}
        s_add_u32 s{sT0}, s{sT0}, s{sBLK}
        s_add_u32 s{sT0}, s{sT0}, {yoff}
        s_add_u32 s{sT1}, s{sT0}, {32*P64}""")
        for r in range(4):
            self(f"v_permlane32_swap_b32 v{vACC+r}, v{vACC+4+r}")
        if nl == 3:
            for r in range(4):
                self(f"v_permlane32_swap_b32 v{vACC+8+r}, v{20+r}")
        else:
            self("s_nop 0")
        for r in range(4):
            self(f"v_add_f32_dpp v{vACC+r}, v{vACC+4+r}, v{vACC+r} row_ror:8 row_mask:0xf bank_mask:0xf")
        if nl == 3:
            for r in range(4):
                self(f"v_add_f32_dpp v{vACC+8+r}, v{20+r}, v{vACC+8+r} row_ror:8 row_mask:0xf bank_mask:0xf")
        self(f"""s_mov_b32 exec_lo, 0x00ff00ff
        s_mov_b32 exec_hi, 0x00ff00ff
        buffer_store_dwordx4 {vr(vACC)}, v{T}, {sreg(sWS)}, s{sT0} offen sc1""")
        if nl == 3:
            self(f"""s_mov_b32 exec_hi, 0
            buffer_store_dwordx4 {vr(vACC+8)}, v{T}, {sreg(sWS)}, s{sT1} offen sc1""")
        self("s_mov_b64 exec, -1")

    def reducer(self, yoff, P, final_possible, xoff):
        nld = P // 64
        T = 32
        self(f"""s_sub_u32 s{sT3}, s2, {RED0}
        s_mul_i32 s{sT1}, s{sT3}, {P*64}
        s_lshl_b32 s{sT0}, s{sWV}, 10
        s_add_u32 s{sT1}, s{sT1}, s{sT0}
        s_add_u32 s{sT1}, s{sT1}, s{sBLK}
        s_add_u32 s{sT1}, s{sT1}, {yoff}""")
        for k in range(1, nld):
            self(f"v_add_u32 v{T+k}, {4096*k}, v{vL16}")
        lds = [f"buffer_load_dwordx4 {vr(8+4*k)}, v{vL16 if k == 0 else T+k}, {sreg(sWS)}, s{sT1} offen sc1" for k in range(nld)]
        self.poll(lds, list(range(8, 8 + 4 * nld)), 39)
        for k in range(1, nld):
            for r in range(4):
                self(f"v_add_f32 v{8+r}, v{8+r}, v{8+4*k+r}")
        self(f"""v_and_b32 v{T}, 3, v{vLANE}
        v_lshlrev_b32 v{T}, 4, v{T}
        v_permlane32_swap_b32 v8, v9
        v_permlane32_swap_b32 v10, v11
        v_lshrrev_b32 v{T+1}, 5, v{vLANE}
        v_lshl_add_u32 v{T}, v{T+1}, 2, v{T}
        v_add_f32 v8, v8, v9
        v_add_f32 v10, v10, v11
        v_and_b32 v{T+1}, 16, v{vLANE}
        v_lshrrev_b32 v{T+1}, 1, v{T+1}
        v_permlane16_swap_b32 v8, v10
        v_add_u32 v{T}, v{T}, v{T+1}
        s_lshl_b32 s{sT0}, s{sWV}, 6
        v_add_f32 v8, v8, v10
        s_add_u32 s{sT0}, s{sT0}, {L_RED}
        v_add_u32 v{T}, s{sT0}, v{T}
        v_add_f32_dpp v8, v8, v8 row_ror:4 row_mask:0xf bank_mask:0xf
        s_nop 1
        v_add_f32_dpp v8, v8, v8 row_ror:8 row_mask:0xf bank_mask:0xf
        ds_write_b32 v{T}, v8
        s_waitcnt lgkmcnt(0)
        s_barrier""")
        done = self.lab("L_reddone")
        self(f"""s_cmp_lg_u32 s{sWV}, 0
        s_cbranch_scc1 {done}
        s_mov_b64 exec, 0xf""")
        self(f"""v_add_u32 v{T}, {L_RED}, v{vL16}
        ds_read_b128 v[8:11], v{T}
        ds_read_b128 v[12:15], v{T} offset:64
        ds_read_b128 v[16:19], v{T} offset:128
        ds_read_b128 v[20:23], v{T} offset:192
        ds_read_b128 v[24:27], v{T} offset:{L_XK-L_RED}
        s_lshl_b32 s{sT0}, s{sT3}, 6
        s_add_u32 s{sT0}, s{sT0}, s{sBLK}
        s_add_u32 s{sT0}, s{sT0}, {xoff}
        s_waitcnt lgkmcnt(0)""")
        for r in range(4):
            self(f"v_add_f32 v{8+r}, v{8+r}, v{12+r}\nv_add_f32 v{16+r}, v{16+r}, v{20+r}")
        for r in range(4):
            self(f"v_add_f32 v{8+r}, v{8+r}, v{16+r}")
        for r in range(4):
            self.bf16r(8 + r, 8 + r)
        for r in range(4):
            self(f"v_add_f32 v{8+r}, v{8+r}, v{24+r}")
        if final_possible:
            nf = self.lab("L_notfinal")
            self(f"""s_cmp_eq_u32 s{sPASS}, 0
            s_cbranch_scc1 {nf}
            v_cvt_pk_bf16_f32 v12, v8, v9
            v_cvt_pk_bf16_f32 v13, v10, v11
            v_lshlrev_b32 v{T+1}, 3, v{vLANE}
            s_lshl_b32 s{sT0}, s{sT3}, 5
            buffer_store_dwordx2 v[12:13], v{T+1}, {sreg(sOUT)}, s{sT0} offen
            s_mov_b64 exec, -1
            s_branch {done}
            {nf}:""")
        for r in range(4):
            self.bf16r(8 + r, 8 + r)
        self(f"""buffer_store_dwordx4 v[8:11], v{vL16}, {sreg(sWS)}, s{sT0} offen sc1
        ds_write_b128 v{T}, v[8:11] offset:{L_XK-L_RED}
        s_waitcnt lgkmcnt(0)
        s_mov_b64 exec, -1
        {done}:""")

    def build(self):
        A = self.A
        T = vT
        g = self
        g("s_cmp_ge_u32 s2, 256\ns_cbranch_scc1 L_end")
        g.stamp(0)
        g(f"""s_load_dwordx2 s[{sX}:{sX+1}], s[0:1], 0
        s_load_dwordx2 s[{sK}:{sK+1}], s[0:1], 8
        s_load_dwordx2 s[{sV}:{sV+1}], s[0:1], 16
        s_load_dwordx2 s[{sWQ}:{sWQ+1}], s[0:1], 24
        s_load_dwordx2 s[{sWO}:{sWO+1}], s[0:1], 32
        s_load_dwordx2 s[{sW1}:{sW1+1}], s[0:1], 48
        s_load_dwordx2 s[{sW2}:{sW2+1}], s[0:1], 56
        s_load_dwordx2 s[{sOUT}:{sOUT+1}], s[0:1], 64
        s_load_dwordx2 s[{sDBG}:{sDBG+1}], s[0:1], 72
        s_load_dwordx2 s[{sWS}:{sWS+1}], s[0:1], 80
        v_lshrrev_b32 v1, 6, v0
        v_and_b32 v{vLANE}, 63, v0
        v_readfirstlane_b32 s{sWV}, v1""")
        for s, n in ((sX, 1280), (sK, HB), (sV, HB), (sWQ, 640*6144*2), (sWO, 6144*640*2), (sW1, 640*1536*2),
                     (sW2, 1536*640*2), (sOUT, 1280), (sDBG, 256), (sWS, WS_REC)):
            g(f"s_mov_b32 s{s+2}, {n}\ns_mov_b32 s{s+3}, 0x20000")
        if self.mapx == 0:
            g(f"s_lshr_b32 s{sH}, s2, 3\ns_and_b32 s{sS}, s2, 7")
        else:
            g(f"""s_and_b32 s{sH}, s2, 7
            s_lshl_b32 s{sH}, s{sH}, 2
            s_bfe_u32 s{sS}, s2, 0x20003
            s_add_u32 s{sH}, s{sH}, s{sS}
            s_lshr_b32 s{sS}, s2, 5""")
        g(f"""v_lshlrev_b32 v{vL16}, 4, v{vLANE}
        v_bfe_u32 v{vKO}, v{vLANE}, 1, 3
        v_mul_u32_u24 v{vKO}, 384, v{vKO}
        v_and_b32 v{T}, 1, v{vLANE}
        v_lshl_add_u32 v{vKO}, v{T}, 6, v{vKO}
        v_and_b32 v{T}, 48, v{vLANE}
        v_add_u32 v{vKO}, v{vKO}, v{T}
        v_lshrrev_b32 v{vVO}, 3, v{vLANE}
        v_mul_u32_u24 v{vVO}, 384, v{vVO}
        v_and_b32 v{T}, 7, v{vLANE}
        v_lshl_add_u32 v{vVO}, v{T}, 4, v{vVO}
        v_and_b32 v{T+1}, 1, v{vLANE}
        v_lshlrev_b32 v{T+1}, 4, v{T+1}
        v_mov_b32 v{T+2}, 0xffff
        v_lshlrev_b32 v{T+1}, v{T+1}, v{T+2}
        v_lshrrev_b32 v{T}, 1, v{T}""")
        for r in range(4):
            g(f"v_cmp_eq_u32 vcc, {r}, v{T}\ns_nop 1\nv_cndmask_b32 v{vMK+r}, 0, v{T+1}, vcc")
        g(f"""s_mov_b32 s{sPASS}, 0
        s_mov_b32 s{sBLK}, {W_B0}
        s_mov_b32 s{sQP}, {W_QP0}
        s_mul_i32 s{sWB}, s{sWV}, 9216
        s_cmp_eq_u32 s{sWV}, 3
        s_cselect_b32 s{sWB}, {WOFF[3]}, s{sWB}
        s_add_u32 s{sWB}, s{sWB}, {L_W}
        s_lshl_b32 s{sU0}, s{sS}, 2
        s_add_u32 s{sU0}, s{sU0}, s{sWV}
        s_mul_i32 s{sU0}, s{sU0}, {UB}
        s_mov_b32 s{sT5}, {TSTRIDE}
        s_mul_i32 s{sT0}, s{sH}, {HB}
        s_waitcnt lgkmcnt(0)
        s_add_u32 s{sK}, s{sK}, s{sT0}
        s_addc_u32 s{sK+1}, s{sK+1}, 0
        s_add_u32 s{sV}, s{sV}, s{sT0}
        s_addc_u32 s{sV+1}, s{sV+1}, 0""")
        nc = g.lab("L_noclr")
        g(f"""s_cmp_lg_u32 s{sWV}, 0
        s_cbranch_scc1 {nc}
        v_mov_b32 v8, -1
        v_mov_b32 v9, -1
        v_mov_b32 v10, -1
        v_mov_b32 v11, -1
        s_lshl_b32 s{sT0}, s2, 10
        buffer_store_dwordx4 v[8:11], v{vL16}, {sreg(sWS)}, s{sT0} offen sc1
        s_mul_i32 s{sT0}, s2, 12288
        s_add_u32 s{sT0}, s{sT0}, {W_CLR}""")
        for i in range(3):
            for j in range(4):
                g(f"buffer_store_dwordx4 v[8:11], v{vL16}, {sreg(sWS)}, s{sT0} offen offset:{1024*j} sc1")
            g(f"s_add_u32 s{sT0}, s{sT0}, 4096")
        g(f"{nc}:")
        g(f"""v_lshlrev_b32 v32, 3, v{vLANE}
        v_lshlrev_b32 v33, 2, v{vLANE}
        s_mul_i32 s{sT0}, s{sS}, 10
        s_add_u32 s{sT0}, s{sT0}, s{sWV}
        s_lshl_b32 s{sT0}, s{sT0}, 4
        v_lshrrev_b32 v34, 3, v{vLANE}
        v_lshl_add_u32 v34, v34, 1, s{sT0}
        buffer_load_dwordx2 v[20:21], v32, {sreg(sX)}, 0 offen
        buffer_load_dwordx2 v[22:23], v32, {sreg(sX)}, 0 offen offset:512
        buffer_load_dword v24, v33, {sreg(sX)}, 0 offen offset:1024
        buffer_load_ushort v36, v34, {sreg(sX)}, 0 offen
        buffer_load_ushort v37, v34, {sreg(sX)}, 0 offen offset:64
        buffer_load_ushort v38, v34, {sreg(sX)}, 0 offen offset:128""")
        g(f"""s_sub_u32 s{sT0}, s2, {RED0}
        s_lshl_b32 s{sT0}, s{sT0}, 5
        v_lshl_add_u32 v35, v{vLANE}, 1, s{sT0}
        buffer_load_ushort v39, v35, {sreg(sX)}, 0 offen""")
        g.dma_wq()
        lw0, lj = g.lab("L_w0"), g.lab("L_join")
        g(f"s_cmp_eq_u32 s{sWV}, 0\ns_cbranch_scc1 {lw0}")
        g(f"""s_sub_u32 s{sT0}, s{sWV}, 1
        s_lshl_b32 s{sT1}, s{sT0}, 7
        s_lshl_b32 s{sT0}, s{sT0}, 10
        s_mul_i32 s{sT2}, s{sS}, {4*UB}
        s_add_u32 s{sT1}, s{sT1}, s{sT2}""")
        for t in range(NLDS):
            for w in range(4):
                for kv in range(2):
                    srd, vo = (sK, vKO) if kv == 0 else (sV, vVO)
                    g(f"""s_add_u32 m0, s{sT0}, {L_UNITS + (w*NLDS+t)*6144 + kv*3072}
                    s_add_u32 s{sT2}, s{sT1}, {t*TSTRIDE + w*UB}
                    buffer_load_dwordx4 v{vo}, {sreg(srd)}, s{sT2} offen{self.pol} lds""")
        g(f"s_waitcnt vmcnt({8*NLDS})\ns_branch {lj}\n{lw0}:")
        g(f"""s_waitcnt vmcnt(0)
        s_mov_b32 s{sT0}, 1
        s_lshl_b32 s{sT1}, s{sH}, 3
        s_atomic_add s{sT0}, s[{sDBG}:{sDBG+1}], s{sT1}
        {lj}:""")
        for i in range(5):
            g(f"v_lshlrev_b32 v{8+2*i}, 16, v{20+i}\nv_and_b32 v{9+2*i}, 0xffff0000, v{20+i}")
        for i in range(3):
            g(f"v_lshlrev_b32 v{36+i}, 16, v{36+i}")
        g(f"""v_lshlrev_b32 v39, 16, v39
        v_lshlrev_b32 v35, 2, v{vLANE}
        v_add_u32 v35, {L_XK}, v35
        s_mov_b64 exec, 0xffff
        ds_write_b32 v35, v39
        s_mov_b64 exec, -1""")

        g("L_stageq:")
        g(f"v_add_u32 v39, s{sWB}, v{vL16}")
        for j in range(3):
            g(f"ds_read_b128 {ar(aQ+4*j)}, v39 offset:{j*1024}")
        for j in range(3):
            g(f"ds_read_b128 {vr(20+4*j)}, v39 offset:{(3+j)*1024}")
        g.ln()
        g.mkA(32, 36)
        g("s_waitcnt lgkmcnt(0)\ns_nop 0")
        for j in range(3):
            g(f"v_mfma_f32_16x16x32_bf16 {vr(vACC+4*j)}, v[32:35], {ar(aQ+4*j)}, 0")
        q2 = g.lab("L_q2")
        g(f"s_cmp_ge_u32 s{sWV}, 2\ns_cbranch_scc1 {q2}")
        for j in range(3):
            g(f"ds_read_b128 {ar(aQ+4*j)}, v39 offset:{(6+j)*1024}")
        g.mkA(32, 38)
        g("s_waitcnt lgkmcnt(0)\ns_nop 0")
        for j in range(3):
            g(f"v_mfma_f32_16x16x32_bf16 {vr(vACC+4*j)}, v[32:35], {ar(aQ+4*j)}, {vr(vACC+4*j)}")
        g(f"{q2}:")
        g.mkA(32, 37)
        g("s_nop 1")
        for j in range(3):
            g(f"v_mfma_f32_16x16x32_bf16 {vr(vACC+4*j)}, v[32:35], {vr(20+4*j)}, {vr(vACC+4*j)}")
        g.part_write()
        g("s_waitcnt lgkmcnt(0)\ns_barrier")
        g.stamp(9)
        qj = g.lab("L_qjoin")
        g(f"s_cmp_lg_u32 s{sWV}, 0\ns_cbranch_scc1 {qj}")
        g.part_read()
        g(f"""s_lshl_b32 s{sT0}, s{sH}, 3
        s_add_u32 s{sT1}, s{sT0}, s{sS}
        s_lshl_b32 s{sT0}, s{sT0}, 10
        s_lshl_b32 s{sT1}, s{sT1}, 10
        s_add_u32 s{sT0}, s{sT0}, s{sQP}
        s_add_u32 s{sT1}, s{sT1}, s{sQP}""")
        nb, sp = g.lab("L_nobar"), g.lab("L_bar")
        g(f"""s_cmp_lg_u32 s{sPASS}, 0
        s_cbranch_scc1 {nb}
        s_mov_b32 s{sCNT}, {SPIN}
        v_lshlrev_b32 v33, 3, v{vLANE}
        s_mov_b32 exec_hi, 0
        {sp}:
        buffer_load_dword v32, v33, {sreg(sDBG)}, 0 offen sc1
        s_waitcnt vmcnt(0)
        v_cmp_ne_u32 vcc, 8, v32
        s_cbranch_vccz {nb}
        s_sub_u32 s{sCNT}, s{sCNT}, 1
        s_cbranch_scc0 {sp}
        {nb}:
        s_mov_b64 exec, -1
        s_waitcnt lgkmcnt(0)""")
        for step in (12, 6, 3):
            for r in range(step):
                g(f"v_add_f32 v{8+r}, v{8+r}, v{8+step+r}")
        g(f"""v_mov_b32 v11, 0
        buffer_store_dwordx4 v[8:11], v{vL16}, {sreg(sWS)}, s{sT1} offen sc1
        v_add_u32 v32, 4096, v{vL16}
        s_nop 0""")
        g.poll([f"buffer_load_dwordx3 v[{8+4*k}:{10+4*k}], v{vL16 if k < 4 else 32}, {sreg(sWS)}, s{sT0} offen offset:{(k%4)*1024} sc1"
                if k < 6 else
                f"buffer_load_dwordx3 v[{34+4*(k-6) - (0 if k == 6 else 0)}:{36+4*(k-6)}], v32, {sreg(sWS)}, s{sT0} offen offset:{(k%4)*1024} sc1"
                for k in range(7)] +
               [f"buffer_load_dword v11, v32, {sreg(sWS)}, s{sT0} offen offset:3072 sc1",
                f"buffer_load_dword v15, v32, {sreg(sWS)}, s{sT0} offen offset:3076 sc1",
                f"buffer_load_dword v19, v32, {sreg(sWS)}, s{sT0} offen offset:3080 sc1"],
               [8+4*k+r for k in range(6) for r in range(3)] + [34, 35, 36, 11, 15, 19], 39)
        for r in range(3):
            g(f"""v_add_f32 v{8+r}, v{8+r}, v{12+r}
            v_add_f32 v{16+r}, v{16+r}, v{20+r}
            v_add_f32 v{24+r}, v{24+r}, v{28+r}
            v_add_f32 v{34+r}, v{34+r}, v{11+4*r}""")
        for r in range(3):
            g(f"v_add_f32 v{8+r}, v{8+r}, v{16+r}\nv_add_f32 v{24+r}, v{24+r}, v{34+r}")
        g(f"v_lshlrev_b32 v32, 1, v{vLANE}\nv_add_u32 v32, {L_QB}, v32")
        for r in range(3):
            g(f"v_add_f32 v{8+r}, v{8+r}, v{24+r}\nv_cvt_pk_bf16_f32 v{8+r}, v{8+r}, v{8+r}\nds_write_b16 v32, v{8+r} offset:{128*r}")
        g(f"s_waitcnt lgkmcnt(0)\n{qj}:")
        g("s_barrier")
        g(f"""v_and_b32 v32, 1, v{vLANE}
        v_lshlrev_b32 v32, 6, v32
        v_and_b32 v33, 48, v{vLANE}
        v_add_u32 v32, v32, v33
        v_add_u32 v32, {L_QB}, v32""")
        for j in range(3):
            g(f"ds_read_b128 {ar(aQ+4*j)}, v32 offset:{128*j}")
        g.init_softmax()
        g(f"""s_mul_i32 s{sT0}, s{sWV}, {NLDS*6144}
        v_add_u32 v{T+4}, s{sT0}, v{vL16}""")
        g.stamp(10)
        g(f"s_cmp_lg_u32 s{sPASS}, 0\ns_cbranch_scc1 L_p2start")

        NR1 = NUNIT - NLDS
        e1 = (-NR1) % NSLOT
        e1 = 0
        g(f"""s_add_u32 s{sKOFF}, s{sU0}, {NLDS*TSTRIDE}
        s_mov_b32 s{sVOFF}, s{sKOFF}""")
        for gi in range(A):
            g.issue_group((e1 + gi // 2) % NSLOT, gi % 2)
        g(f"s_waitcnt vmcnt({3*A})\ns_barrier")
        g.dma_wo()
        g(f"""s_mov_b32 s{sKREM}, {NR1 - (A+1)//2}
        s_mov_b32 s{sVREM}, {NR1 - A//2}
        s_mov_b32 s{sREM}, {NR1}""")
        g.lds_unit_read(0, 17)
        for t in range(NLDS):
            if t + 1 < NLDS:
                g.lds_unit_read(t + 1, 17 + (t + 1) % 2)
                g("s_waitcnt lgkmcnt(6)")
            else:
                g("s_waitcnt lgkmcnt(0)")
            g.qk(17 + t % 2)
            g("s_nop 1")
            g.pv(17 + t % 2)
        g.stamp(1)
        g(f"s_branch L_slot{e1}")

        g("L_p2start:")
        NR2 = NUNIT - NLDS - NSLOT
        if self.rev2:
            g(f"""s_add_u32 s{sKOFF}, s{sU0}, {(NLDS+NR2-1)*TSTRIDE}
            s_mov_b32 s{sT5}, {(-TSTRIDE) & 0xffffffff:#x}""")
        else:
            g(f"s_add_u32 s{sKOFF}, s{sU0}, {NLDS*TSTRIDE}")
        g(f"s_mov_b32 s{sVOFF}, s{sKOFF}\ns_waitcnt lgkmcnt(0)")
        pu = list(self.p2units)
        npre = len(pu)
        issued = 0
        for k in range(NSLOT):
            g.qk(k)
            g("s_nop 1")
            g.pv(k)
            if issued < npre and pu[issued] == k:
                g.issue_group(issued, 0)
                g.issue_group(issued, 1)
                issued += 1
            if k == 2:
                g.dma_wo()
            if k == NSLOT - 2:
                g.lds_unit_read(0, 16)
        for t in range(NLDS):
            if t + 1 < NLDS:
                g.lds_unit_read(t + 1, 16 + (t + 1) % 2)
                g("s_waitcnt lgkmcnt(6)")
            else:
                g("s_waitcnt lgkmcnt(0)")
            g.qk(16 + t % 2)
            g("s_nop 1")
            g.pv(16 + t % 2)
        gi = 2 * npre
        u = 0
        while gi < A:
            g.issue_group(gi // 2, gi % 2)
            gi += 1
        while gi - 2 * u > A:
            g(f"s_waitcnt vmcnt({3*(gi - 2*u - 1)})")
            g.qk(u)
            g(f"s_waitcnt vmcnt({3*(gi - 2*u - 2)})")
            if gi - 2 * u - 2 < A:
                g.issue_group(gi // 2, gi % 2)
                gi += 1
            g("s_nop 0")
            g.pv(u)
            u += 1
        assert gi - 2 * u == A
        g(f"""s_mov_b32 s{sKREM}, {NR2 - (gi+1)//2}
        s_mov_b32 s{sVREM}, {NR2 - gi//2}
        s_mov_b32 s{sREM}, {NR2 - u}""")
        g.stamp(1)
        g(f"s_branch L_slot{u}")

        g(".p2align 6")
        for k in range(NSLOT):
            g(f"L_slot{k}:")
            for kv in range(2):
                gidx = kv + A
                tslot = (k + gidx // 2) % NSLOT
                tkv = gidx % 2
                rem = sKREM if tkv == 0 else sVREM
                ni, cont = g.lab("L_noiss"), g.lab("L_cont")
                g(f"""s_waitcnt vmcnt({3*(A-1)})
                s_sub_u32 s{rem}, s{rem}, 1
                s_cbranch_scc1 {ni}""")
                g.issue_group(tslot, tkv)
                g(f"{cont}:")
                if kv == 0:
                    g.qk(k)
                else:
                    g.pv(k)
                self.tail = getattr(self, "tail", [])
                self.tail.append(f"{ni}:\ns_mov_b32 s{rem}, 0\ns_waitcnt vmcnt(0)\ns_branch {cont}")
            g(f"s_sub_u32 s{sREM}, s{sREM}, 1\ns_cmp_eq_u32 s{sREM}, 0\ns_cbranch_scc1 L_passend")
        g("s_branch L_slot0")
        for t in self.tail:
            g(t)
        g.rescale_sub()

        g("L_passend:")
        g.stamp(2)
        g(f"""v_add_f32_dpp v{vLS}, v{vLS}, v{vLS} row_ror:8 row_mask:0xf bank_mask:0xf
        s_nop 1
        v_add_f32_dpp v{vLS}, v{vLS}, v{vLS} row_bcast:15 row_mask:0xa bank_mask:0xf
        s_nop 1
        v_add_f32_dpp v{vLS}, v{vLS}, v{vLS} row_bcast:31 row_mask:0xc bank_mask:0xf
        v_sub_f32 v{vNEG}, 0, v{vNEG}
        s_lshl_b32 s{sT0}, s{sWV}, 3
        s_add_u32 s{sT0}, s{sT0}, {L_ML}
        v_mov_b32 v32, s{sT0}
        s_mov_b32 exec_lo, 0
        s_mov_b32 exec_hi, 0x80000000
        ds_write_b64 v32, v[{vNEG}:{vLS}]
        s_mov_b64 exec, -1""")
        g.part_write()
        g("s_waitcnt lgkmcnt(0)\ns_barrier")
        aj = g.lab("L_ajoin")
        g(f"s_cmp_lg_u32 s{sWV}, 0\ns_cbranch_scc1 {aj}")
        g(f"""v_mov_b32 v36, {L_ML}
        ds_read_b128 v[32:35], v36
        ds_read_b128 v[36:39], v36 offset:16""")
        g.part_read()
        g(f"""s_lshl_b32 s{sT0}, s{sH}, 13
        s_lshl_b32 s{sT1}, s{sS}, 7
        s_add_u32 s{sT0}, s{sT0}, s{sT1}
        s_add_u32 s{sT0}, s{sT0}, s{sBLK}
        s_waitcnt lgkmcnt(12)
        v_readfirstlane_b32 s{sF+4}, v33
        v_max3_f32 v33, v32, v34, v36
        v_max_f32 v33, v33, v38
        v_sub_f32 v32, v32, v33
        v_sub_f32 v34, v34, v33
        v_sub_f32 v36, v36, v33
        v_sub_f32 v38, v38, v33
        v_exp_f32 v32, v32
        v_exp_f32 v34, v34
        v_exp_f32 v36, v36
        v_exp_f32 v38, v38
        v_mul_f32 v35, v35, v34
        v_fmac_f32 v35, s{sF+4}, v32
        v_fmac_f32 v35, v37, v36
        v_fmac_f32 v35, v39, v38
        v_and_b32 v37, 1, v{vLANE}
        v_cmp_eq_u32 vcc, 1, v37
        v_lshrrev_b32 v37, 3, v{vLANE}
        v_and_b32 v39, 7, v{vLANE}
        v_cndmask_b32 v33, v33, v35, vcc
        v_lshlrev_b32 v37, 10, v37
        v_lshl_add_u32 v37, v39, 4, v37
        s_waitcnt lgkmcnt(0)""")
        for w in range(4):
            for j in range(3):
                g(f"v_add_f32 v{8+6*w+j}, v{8+6*w+j}, v{8+6*w+3+j}")
        for j in range(3):
            g(f"v_mul_f32 v{8+j}, v{8+j}, v32")
        for w in range(1, 4):
            for j in range(3):
                g(f"v_fmac_f32 v{8+j}, v{8+6*w+j}, v{32+2*w}")
        g(f"""v_mov_b32 v11, v33
        buffer_store_dwordx4 v[8:11], v37, {sreg(sWS)}, s{sT0} offen offset:{B_AP} sc1
        {aj}:""")
        g.stamp(3)

        def stage_wo(nl):
            g(f"v_add_u32 v39, s{sWB}, v{vL16}")
            for i in range(nl):
                g(f"ds_read_b128 {ar(aQ+4*i)}, v39 offset:{i*1024}")
            for i in range(nl):
                g(f"ds_read_b128 {vr(20+4*i)}, v39 offset:{(nl+i)*1024}")
            g(f"""v_and_b32 v36, 7, v{vLANE}
            v_lshlrev_b32 v36, 7, v36
            v_lshrrev_b32 v37, 3, v{vLANE}
            v_lshl_add_u32 v36, v37, 4, v36
            s_lshl_b32 s{sT0}, s{sH}, 3
            s_add_u32 s{sT0}, s{sT0}, s{sS}
            s_lshl_b32 s{sT0}, s{sT0}, 10
            s_add_u32 s{sT0}, s{sT0}, s{sBLK}""")
            g.poll([f"buffer_load_dwordx4 v[32:35], v36, {sreg(sWS)}, s{sT0} offen offset:{B_AP} sc1"], [32, 33, 34, 35], 37)
            g.stamp(4)
            dp = ("quad_perm:[1,0,3,2]", "quad_perm:[2,3,0,1]", "row_half_mirror")
            g(f"""v_mov_b32 v36, v35
            s_nop 1
            v_mov_b32_dpp v36, v35 row_ror:8 row_mask:0xf bank_mask:0xc
            v_mov_b32_dpp v35, v35 row_ror:8 row_mask:0xf bank_mask:0x3
            s_nop 0
            v_max_f32_dpp v37, v36, v36 {dp[0]} row_mask:0xf bank_mask:0xf
            s_nop 1
            v_max_f32_dpp v37, v37, v37 {dp[1]} row_mask:0xf bank_mask:0xf
            s_nop 1
            v_max_f32_dpp v37, v37, v37 {dp[2]} row_mask:0xf bank_mask:0xf
            v_sub_f32 v36, v36, v37
            v_exp_f32 v36, v36
            s_nop 0""")
            for r in range(4):
                g(f"v_mul_f32 v{32+r}, v{32+r}, v36")
            for d in dp:
                for r in range(4):
                    g(f"v_add_f32_dpp v{32+r}, v{32+r}, v{32+r} {d} row_mask:0xf bank_mask:0xf")
            g("v_rcp_f32 v35, v35\ns_nop 0")
            for j in range(3):
                g(f"v_mul_f32 v{32+j}, v{32+j}, v35\nv_cvt_pk_bf16_f32 v{36+j}, v{32+j}, v{32+j}")
            g.mkA(32, 36)
            g("s_waitcnt lgkmcnt(0)\ns_nop 0")
            for i in range(nl):
                g(f"v_mfma_f32_16x16x32_bf16 {vr(vACC+4*i)}, v[32:35], {ar(aQ+4*i)}, 0")
            for i in range(nl):
                g(f"ds_read_b128 {ar(aQ+4*i)}, v39 offset:{(2*nl+i)*1024}")
            g.mkA(32, 37)
            g("s_nop 1")
            for i in range(nl):
                g(f"v_mfma_f32_16x16x32_bf16 {vr(vACC+4*i)}, v[32:35], {vr(20+4*i)}, {vr(vACC+4*i)}")
            g.mkA(32, 38)
            g("s_waitcnt lgkmcnt(0)\ns_nop 0")
            for i in range(nl):
                g(f"v_mfma_f32_16x16x32_bf16 {vr(vACC+4*i)}, v[32:35], {ar(aQ+4*i)}, {vr(vACC+4*i)}")
            g.publish_y(nl, B_Y1, 256, 2)
        g.by_nl(stage_wo)
        g.stamp(5)
        g(f"s_cmp_ge_u32 s2, {NFFN}\ns_cbranch_scc1 L_notffn")

        g.ffn_index()
        g.dma_ffn()
        g("s_waitcnt vmcnt(0)")

        def stage_ffn(nl):
            g(f"v_add_u32 v39, s{sWB}, v{vL16}")
            for i in range(nl):
                g(f"ds_read_b128 {vr(20+4*i)}, v39 offset:{i*1024}")
            for i in range(nl):
                g(f"ds_read_b128 {ar(aQ+4*i)}, v39 offset:{(nl+i)*1024}")
            g.x_gather(B_X1, "ffn")
            g.stamp(6)
            g.ln()
            g("s_waitcnt lgkmcnt(0)")
            for i in range(nl):
                g(f"v_and_b32 v32, 0xffff, v{36+i}\nv_and_b32 v33, 0xffff0000, v{36+i}")
                for e in range(8):
                    c = f"v{8+e}" if i else "0"
                    g(f"v_dot2_f32_bf16 v{8+e}, v{20+4*i+e//2}, v{32+(e&1)}, {c}")
                g("s_nop 2")
            for e in range(4):
                g(f"v_permlane32_swap_b32 v{8+e}, v{12+e}")
            for e in range(4):
                g(f"v_add_f32 v{8+e}, v{8+e}, v{12+e}")
            g(f"""v_lshrrev_b32 v32, 3, v{vLANE}
            v_lshlrev_b32 v32, 4, v32
            v_permlane16_swap_b32 v8, v10
            v_permlane16_swap_b32 v9, v11
            v_add_u32 v32, {L_HP}, v32
            v_add_f32 v8, v8, v10
            v_add_f32 v9, v9, v11
            s_lshl_b32 s{sT0}, s{sWV}, 2
            v_add_u32 v33, s{sT0}, v32
            v_add_f32_dpp v10, v8, v8 row_ror:8 row_mask:0xf bank_mask:0x3
            s_nop 1
            v_add_f32_dpp v10, v9, v9 row_ror:8 row_mask:0xf bank_mask:0xc
            s_nop 1
            v_add_f32_dpp v10, v10, v10 quad_perm:[1,0,3,2] row_mask:0xf bank_mask:0xf
            s_nop 1
            v_add_f32_dpp v10, v10, v10 quad_perm:[2,3,0,1] row_mask:0xf bank_mask:0xf
            s_nop 1
            v_add_f32_dpp v10, v10, v10 row_half_mirror row_mask:0xf bank_mask:0xf
            ds_write_b32 v33, v10
            s_waitcnt lgkmcnt(0)
            s_barrier
            ds_read_b128 v[8:11], v32
            s_waitcnt lgkmcnt(0)
            v_add_f32 v8, v8, v9
            v_add_f32 v10, v10, v11
            v_add_f32 v8, v8, v10""")
            g.bf16r(8, 8)
            g(f"""v_mul_f32 v9, {NLOG2E:#x}, v8
            v_exp_f32 v9, v9
            s_nop 0
            v_add_f32 v9, 1.0, v9
            v_rcp_f32 v9, v9
            s_nop 0
            v_mul_f32 v8, v8, v9
            v_cvt_pk_bf16_f32 v36, v8, v8""")
            g.mkA(32, 36)
            g("s_nop 1")
            for i in range(nl):
                g(f"v_mfma_f32_16x16x32_bf16 {vr(vACC+4*i)}, v[32:35], {ar(aQ+4*i)}, 0")
            g.publish_y(nl, B_Y2, NFFN, sT3)
        g.by_nl(stage_ffn)
        g.stamp(7)
        g("s_branch L_toq")

        g("L_notffn:")
        g(f"s_cmp_ge_u32 s2, {RED0+NRED}\ns_cbranch_scc1 L_toq")
        g.reducer(B_Y1, 256, False, B_X1)
        g.stamp(6)
        nq = g.lab("L_nowq")
        g(f"s_cmp_lg_u32 s{sPASS}, 0\ns_cbranch_scc1 {nq}")
        g.dma_wq()
        g(f"{nq}:")
        g("s_barrier")
        g.reducer(B_Y2, NFFN, True, B_X2)
        g.stamp(7)
        g(f"s_cmp_lg_u32 s{sPASS}, 0\ns_cbranch_scc1 L_fin\ns_branch L_getx2")

        g("L_toq:")
        g(f"s_cmp_lg_u32 s{sPASS}, 0\ns_cbranch_scc1 L_fin")
        g.dma_wq()
        g("L_getx2:")
        g.x_gather(B_X2, "q")
        g.stamp(8)
        g.dump_stamps()
        g(f"""s_add_u32 s{sQP}, s{sBLK}, {B_QP}
        s_mov_b32 s{sBLK}, {W_B1}
        s_mov_b32 s{sPASS}, 1
        s_branch L_stageq""")
        g("L_fin:")
        g("s_waitcnt vmcnt(0)")
        g.stamp(8)
        g.dump_stamps()
        g("L_end:\ns_endpgm")

        out = HEADER + f"; @launch grid=(256,1,1) block=(256,1,1) lds={LDS_BYTES}\n"
        out += f'.amdgcn_target "amdgcn-amd-amdhsa--gfx950"\n.text\n.globl {KN}\n.p2align 8\n.type {KN},@function\n{KN}:\n'
        out += "\n".join(self.L) + "\n"
        out += f""".section .rodata,"a"
.p2align 6
.amdhsa_kernel {KN}
  .amdhsa_next_free_vgpr 512
  .amdhsa_next_free_sgpr 102
  .amdhsa_accum_offset 256
  .amdhsa_group_segment_fixed_size 0
  .amdhsa_kernarg_size 88
  .amdhsa_user_sgpr_count 2
  .amdhsa_user_sgpr_kernarg_segment_ptr 1
  .amdhsa_system_sgpr_workgroup_id_x 1
.end_amdhsa_kernel
"""
        return out


def parse(spec):
    kw = {}
    if spec:
        for kv in spec.split(","):
            k, v = kv.split("=")
            try:
                v = ast.literal_eval(v.replace(":", ","))
            except Exception:
                pass
            if k.endswith("pol"):
                v = "" if v == "def" else v.replace("+", " ")
            kw[k] = v
    return kw


if __name__ == "__main__":
    open(sys.argv[1], "w").write(Gen(**parse(sys.argv[2] if len(sys.argv) > 2 else "")).build())
```

```python
import sys, ast

KN = "interleave_layers__mha_block_cached__dense_activation_silu__decode_kernel"

HEADER = """; Kernarg layout for this problem (88 bytes, ptrs only, base s[0:1]):
"""

HB = 12582912
UB = 3072
TSTRIDE = 32 * UB
NUNIT = 128
NSLOT = 19
NLDS = 5
L_UNITS = 0
L_W = 4 * NLDS * 6144
L_S = L_W + 30720
L_PART = L_S
L_ML = L_PART + 6144
L_QB = L_ML + 64
L_RED = L_QB + 384
L_HP = L_RED + 256
L_XK = L_HP + 128
L_END = L_XK + 64
LDS_BYTES = 163840
assert L_END <= LDS_BYTES
WOFF = [0, 9216, 18432, 24576]
K1 = 1024
W_QP0 = 0
W_B0 = 256 * K1
B_AP = 0
B_Y1 = 256 * K1
B_Y2 = B_Y1 + 640 * K1
B_X1 = B_Y2 + 480 * K1
B_X2 = B_X1 + 4 * K1
B_QP = B_X2 + 4 * K1
B_SIZE = B_QP + 256 * K1
W_B1 = W_B0 + B_SIZE
W_CLR = W_B0
assert W_B1 + B_X2 <= W_CLR + 3072 * K1
W_STAMP = 4096 * K1
WS_REC = 8192 * K1
NRED = 40
RED0 = 192
NFFN = 192
SCALE = 0x3d93cd3a
LOG2E = 0x3fb8aa3b
NLOG2E = 0xbfb8aa3b
INV640 = 0x3acccccd
EPS = 0x3727c5ac
SPIN = 400000

sK, sV, sWS, sWQ, sWO, sW1, sW2, sX, sOUT, sDBG = 4, 8, 12, 16, 20, 24, 28, 32, 36, 40
sH, sS, sWV = 44, 45, 46
sKOFF, sVOFF = 47, 48
sKREM, sVREM = 49, 50
sREM = 51
sM = 52
sPASS = 53
sRET = 54
sBLK = 56
sQP = 57
sWB = 58
sCNT = 59
sT0, sT1, sT2, sT3, sT4, sT5 = 60, 61, 62, 63, 64, 65
sEX = 66
sU0 = 68
sF = 70
sST = 76

vLANE, vKO, vVO, vL16 = 0, 1, 2, 3
vMK = 4
vACC = 8
vD = 20
vP = 24
vNEG, vLS = 28, 29
vT = 30
aQ = 240


def sreg(n, k=4):
    return f"s[{n}:{n+k-1}]"


def vr(n, k=4):
    return f"v[{n}:{n+k-1}]" if k > 1 else f"v{n}"


def ar(n, k=4):
    return f"a[{n}:{n+k-1}]" if k > 1 else f"a{n}"


def slot_reg(k, i):
    if k < 9:
        return vr(40 + 24 * k + 4 * i)
    return ar(24 * (k - 9) + 4 * i)


class Gen:
    def __init__(self, A=2, mapx=1, pol="nt", stamps=False, wpol="nt", p2units=(0, 1, 7, 13), rev2=False, dbgst=False):
        self.dbgst = dbgst
        self.L = []
        self.A = A
        self.mapx = mapx
        self.pol = (" " + pol) if pol else ""
        self.wpol = (" " + wpol) if wpol else ""
        self.stamps = stamps
        self.nst = 0
        self.uid = 0
        self.p2units = p2units
        self.rev2 = rev2

    def __call__(self, s):
        for line in s.strip("\n").split("\n"):
            line = line.strip()
            if line:
                self.L.append(line if line.endswith(":") else "    " + line)

    def lab(self, p="L"):
        self.uid += 1
        return f"{p}_{self.uid}"

    def stamp(self, idx):
        if self.stamps:
            assert idx < 12
            self(f"s_memrealtime s[{sST+2*idx}:{sST+2*idx+1}]")

    def dump_stamps(self):
        if not self.stamps:
            return
        self("s_waitcnt lgkmcnt(0)")
        self(f"v_mov_b32 v{vT}, 0")
        for i in range(12):
            self(f"v_writelane_b32 v{vT}, s{sST+2*i}, {i}")
        self(f"""s_getreg_b32 s{sT0}, hwreg(HW_REG_XCC_ID)
        v_writelane_b32 v{vT}, s{sT0}, 15
        s_lshl_b32 s{sT0}, s2, 2
        s_add_u32 s{sT0}, s{sT0}, s{sWV}
        s_lshl_b32 s{sT0}, s{sT0}, 1
        s_add_u32 s{sT0}, s{sT0}, s{sPASS}
        s_lshl_b32 s{sT0}, s{sT0}, 6
        s_add_u32 s{sT0}, s{sT0}, {W_STAMP}
        v_lshlrev_b32 v{vT+1}, 2, v{vLANE}
        s_mov_b64 exec, 0xffff
        buffer_store_dword v{vT}, v{vT+1}, {sreg(sWS)}, s{sT0} offen
        s_mov_b64 exec, -1
        s_waitcnt vmcnt(0)""")
        if self.dbgst:
            sk = self.lab("L_nodbg")
            self(f"""s_cmp_lg_u32 s2, 200
            s_cbranch_scc1 {sk}
            s_cmp_lg_u32 s{sWV}, 0
            s_cbranch_scc1 {sk}""")
            for i, k in enumerate((10, 1, 2, 8)):
                self(f"s_sub_u32 s{sT0}, s{sST+2*k}, s{sST}\nv_writelane_b32 v{vT}, s{sT0}, {i}")
            self(f"""v_lshlrev_b32 v{vT+1}, 3, v{vLANE}
            s_lshl_b32 s{sT0}, s{sPASS}, 5
            s_mov_b64 exec, 0xf
            buffer_store_dword v{vT}, v{vT+1}, {sreg(sDBG)}, s{sT0} offen offset:4
            s_mov_b64 exec, -1
            s_waitcnt vmcnt(0)
            {sk}:""")

    def poll(self, loads, regs, tmp):
        top, done = self.lab("L_poll"), self.lab("L_got")
        self(f"s_mov_b32 s{sCNT}, {SPIN}")
        self(f"{top}:")
        for ld in loads:
            self(ld)
        self("s_waitcnt vmcnt(0)")
        r = list(regs)
        if len(r) % 2 == 0:
            self(f"v_max_u32 v{tmp}, v{r[0]}, v{r[1]}")
            r = r[2:]
        else:
            self(f"v_max3_u32 v{tmp}, v{r[0]}, v{r[1]}, v{r[2]}")
            r = r[3:]
        while r:
            self(f"v_max3_u32 v{tmp}, v{tmp}, v{r[0]}, v{r[1]}")
            r = r[2:]
        self(f"""v_cmp_eq_u32 vcc, -1, v{tmp}
        s_cbranch_vccz {done}
        s_sub_u32 s{sCNT}, s{sCNT}, 1
        s_cbranch_scc0 {top}
        {done}:""")

    def bf16r(self, d, s):
        self(f"v_cvt_pk_bf16_f32 v{d}, v{s}, v{s}\nv_and_b32 v{d}, 0xffff0000, v{d}")

    def mkA(self, dst, src):
        for r in range(4):
            self(f"v_and_b32 v{dst+r}, v{vMK+r}, v{src}")

    def issue_group(self, slot, kv):
        srd, vo, so = (sK, vKO, sKOFF) if kv == 0 else (sV, vVO, sVOFF)
        for j in range(3):
            self(f"buffer_load_dwordx4 {slot_reg(slot, 3*kv+j)}, v{vo}, {sreg(srd)}, s{so} offen offset:{128*j}{self.pol}")
        self(f"s_add_u32 s{so}, s{so}, s{sT5}")

    def qk(self, slot):
        T = vT
        self(f"""v_mfma_f32_16x16x32_bf16 {vr(vD)}, {slot_reg(slot,0)}, {ar(aQ)}, 0
        v_mfma_f32_16x16x32_bf16 {vr(vD)}, {slot_reg(slot,1)}, {ar(aQ+4)}, {vr(vD)}
        v_mfma_f32_16x16x32_bf16 {vr(vD)}, {slot_reg(slot,2)}, {ar(aQ+8)}, {vr(vD)}
        s_nop 7
        v_add_f32_dpp v{T}, v{vD+1}, v{vD} quad_perm:[1,0,3,2] row_mask:0xf bank_mask:0x3
        s_nop 1
        v_add_f32_dpp v{T}, v{vD+3}, v{vD+2} quad_perm:[1,0,3,2] row_mask:0xf bank_mask:0xc
        s_nop 1
        v_mov_b32_dpp v{T+1}, v{T} quad_perm:[0,0,2,2] row_mask:0xf bank_mask:0xf""")
        self.bf16r(T + 1, T + 1)
        self(f"v_mul_f32 v{T+1}, {SCALE:#x}, v{T+1}")
        self.bf16r(T + 1, T + 1)
        sk = self.lab("L_nors")
        self(f"""v_cmp_lt_f32 vcc, s{sM}, v{T+1}
        s_cbranch_vccz {sk}
        s_call_b64 s[{sRET}:{sRET+1}], L_rescale
        {sk}:
        v_fmamk_f32 v{T+1}, v{T+1}, {LOG2E:#x}, v{vNEG}
        v_exp_f32 v{T+1}, v{T+1}
        s_nop 0
        v_add_f32 v{vLS}, v{vLS}, v{T+1}
        v_cvt_pk_bf16_f32 v{T+1}, v{T+1}, v{T+1}""")
        self.mkA(vP, T + 1)

    def pv(self, slot):
        for j in range(3):
            self(f"v_mfma_f32_16x16x32_bf16 {vr(vACC+4*j)}, {vr(vP)}, {slot_reg(slot,3+j)}, {vr(vACC+4*j)}")

    def rescale_sub(self):
        T = vT
        self(f"""L_rescale:
        s_nop 1
        v_max_f32_dpp v{T+2}, v{T+1}, v{T+1} row_ror:8 row_mask:0xf bank_mask:0xf
        s_nop 1
        v_max_f32_dpp v{T+2}, v{T+2}, v{T+2} row_bcast:15 row_mask:0xa bank_mask:0xf
        s_nop 1
        v_max_f32_dpp v{T+2}, v{T+2}, v{T+2} row_bcast:31 row_mask:0xc bank_mask:0xf
        s_nop 1
        v_readlane_b32 s{sM}, v{T+2}, 63
        s_nop 1
        v_mov_b32 v{T+2}, s{sM}
        v_mul_f32 v{T+2}, {NLOG2E:#x}, v{T+2}
        v_sub_f32 v{T+3}, v{T+2}, v{vNEG}
        v_exp_f32 v{T+3}, v{T+3}
        v_mov_b32 v{vNEG}, v{T+2}
        v_mul_f32 v{vLS}, v{vLS}, v{T+3}""")
        for r in range(12):
            self(f"v_mul_f32 v{vACC+r}, v{vACC+r}, v{T+3}")
        self(f"s_setpc_b64 s[{sRET}:{sRET+1}]")

    def init_softmax(self):
        for r in range(12):
            self(f"v_mov_b32 v{vACC+r}, 0")
        self(f"""v_mov_b32 v{vLS}, 0
        v_mov_b32 v{vNEG}, 0x7f800000
        s_mov_b32 s{sM}, 0xff800000""")

    def lds_unit_read(self, t, slot):
        for i in range(6):
            self(f"ds_read_b128 {slot_reg(slot,i)}, v{vT+4} offset:{t*6144 + i*1024}")

    def dma_tiles(self, srd, vaddr, tiles):
        for lo, imm in tiles:
            self(f"""s_add_u32 m0, s{sWB}, {lo}
            s_add_u32 s{sT2}, s{sT1}, {imm}
            buffer_load_dwordx4 v{vaddr}, {sreg(srd)}, s{sT2} offen{self.wpol} lds""")

    def by_nl(self, fn):
        l2, le = self.lab("L_nl2"), self.lab("L_nle")
        self(f"s_cmp_ge_u32 s{sWV}, 2\ns_cbranch_scc1 {l2}")
        fn(3)
        self(f"s_branch {le}\n{l2}:")
        fn(2)
        self(f"{le}:")

    def dma_wq(self):
        T = vT
        self(f"""v_lshrrev_b32 v{T}, 3, v{vLANE}
        v_mul_u32_u24 v{T}, 12288, v{T}
        v_and_b32 v{T+1}, 7, v{vLANE}
        v_lshl_add_u32 v{T}, v{T+1}, 4, v{T}
        s_mul_i32 s{sT1}, s{sS}, 10
        s_add_u32 s{sT1}, s{sT1}, s{sWV}
        s_mul_i32 s{sT1}, s{sT1}, {8*12288}
        s_mul_i32 s{sT2}, s{sH}, 384
        s_add_u32 s{sT1}, s{sT1}, s{sT2}""")
        self.by_nl(lambda nl: self.dma_tiles(sWQ, T, [((i*3+j)*1024, i*32*12288 + j*128) for i in range(nl) for j in range(3)]))

    def dma_wo(self):
        T = vT
        self(f"""v_lshrrev_b32 v{T}, 3, v{vLANE}
        v_mul_u32_u24 v{T}, 1280, v{T}
        v_and_b32 v{T+1}, 7, v{vLANE}
        v_lshl_add_u32 v{T}, v{T+1}, 4, v{T}
        s_mul_i32 s{sT1}, s{sH}, 24
        s_add_u32 s{sT1}, s{sT1}, s{sS}
        s_mul_i32 s{sT1}, s{sT1}, {8*1280}
        s_lshl_b32 s{sT2}, s{sWV}, 7
        s_add_u32 s{sT1}, s{sT1}, s{sT2}""")
        self.by_nl(lambda nl: self.dma_tiles(sWO, T, [((j*nl+i)*1024, j*64*1280 + i*512) for j in range(3) for i in range(nl)]))

    def dma_ffn(self):
        T = vT
        self(f"""v_mul_u32_u24 v{T}, 3072, v{vLANE}
        s_mul_i32 s{sT1}, s{sWV}, {64*3072}
        s_lshl_b32 s{sT2}, s{sT3}, 4
        s_add_u32 s{sT1}, s{sT1}, s{sT2}""")
        self.by_nl(lambda nl: self.dma_tiles(sW1, T, [(i*1024, i*256*3072) for i in range(nl)]))
        self(f"""v_lshrrev_b32 v{T}, 3, v{vLANE}
        v_mul_u32_u24 v{T}, 1280, v{T}
        v_and_b32 v{T+1}, 7, v{vLANE}
        v_lshl_add_u32 v{T}, v{T+1}, 4, v{T}
        s_mul_i32 s{sT1}, s{sT3}, {8*1280}
        s_lshl_b32 s{sT2}, s{sWV}, 7
        s_add_u32 s{sT1}, s{sT1}, s{sT2}""")
        self.by_nl(lambda nl: self.dma_tiles(sW2, T, [((nl+i)*1024, i*512) for i in range(nl)]))

    def ffn_index(self):
        self(f"""s_and_b32 s{sT3}, s2, 7
        s_mul_i32 s{sT3}, s{sT3}, 24
        s_lshr_b32 s{sT2}, s2, 3
        s_add_u32 s{sT3}, s{sT3}, s{sT2}""")

    def ln(self):
        S1, S2, T = 18, 19, 32
        self(f"v_readfirstlane_b32 s{sT0}, v8\ns_nop 1")
        self(f"v_subrev_f32 v{S1}, s{sT0}, v8\nv_mul_f32 v{S2}, v{S1}, v{S1}")
        for i in range(1, 10):
            self(f"v_subrev_f32 v{T+(i&1)}, s{sT0}, v{8+i}\nv_add_f32 v{S1}, v{S1}, v{T+(i&1)}\nv_fmac_f32 v{S2}, v{T+(i&1)}, v{T+(i&1)}")
        self("s_nop 0")
        for d in ("quad_perm:[1,0,3,2] row_mask:0xf", "quad_perm:[2,3,0,1] row_mask:0xf", "row_half_mirror row_mask:0xf",
                  "row_mirror row_mask:0xf", "row_bcast:15 row_mask:0xa", "row_bcast:31 row_mask:0xc"):
            self(f"""s_nop 0
            v_add_f32_dpp v{S1}, v{S1}, v{S1} {d} bank_mask:0xf
            v_add_f32_dpp v{S2}, v{S2}, v{S2} {d} bank_mask:0xf""")
        self(f"""s_nop 0
        v_readlane_b32 s{sT1}, v{S1}, 63
        v_readlane_b32 s{sT2}, v{S2}, 63
        v_mov_b32 v{T}, {INV640:#x}
        s_nop 0
        v_mul_f32 v{S1}, s{sT1}, v{T}
        v_mul_f32 v{S2}, s{sT2}, v{T}
        v_fma_f32 v{S2}, -v{S1}, v{S1}, v{S2}
        v_max_f32 v{S2}, 0, v{S2}
        v_add_f32 v{S1}, s{sT0}, v{S1}""")
        self.bf16r(S1, S1)
        self.bf16r(S2, S2)
        self(f"v_add_f32 v{S2}, {EPS:#x}, v{S2}")
        self.bf16r(S2, S2)
        self(f"v_sqrt_f32 v{S2}, v{S2}\ns_nop 0")
        self.bf16r(S2, S2)
        self(f"v_rcp_f32 v{S2}, v{S2}")
        for i in range(3):
            self(f"v_sub_f32 v{36+i}, v{36+i}, v{S1}")
            self.bf16r(36 + i, 36 + i)
        for i in range(3):
            self(f"v_mul_f32 v{36+i}, v{36+i}, v{S2}\nv_cvt_pk_bf16_f32 v{36+i}, v{36+i}, v{36+i}")

    def x_gather(self, xoff, mode):
        T = 32
        if mode == "ffn":
            self(f"""s_lshl_b32 s{sT0}, s{sWV}, 8
            v_lshl_add_u32 v{T}, v{vLANE}, 2, s{sT0}
            s_cmp_lt_u32 s{sWV}, 2
            s_cselect_b32 s{sT0}, 2, 1
            s_lshl_b32 s{sT0}, s{sT0}, 10""")
            o1 = 1024
        else:
            self(f"""s_mul_i32 s{sT0}, s{sS}, 10
            s_add_u32 s{sT0}, s{sT0}, s{sWV}
            s_lshl_b32 s{sT0}, s{sT0}, 5
            v_lshrrev_b32 v{T}, 3, v{vLANE}
            v_lshl_add_u32 v{T}, v{T}, 2, s{sT0}
            s_cmp_lt_u32 s{sWV}, 2
            s_cselect_b32 s{sT0}, 2, 1
            s_lshl_b32 s{sT0}, s{sT0}, 7""")
            o1 = 128
        self(f"""v_add_u32 v{T+1}, s{sT0}, v{T}
        v_lshlrev_b32 v{T+2}, 3, v{vLANE}
        s_add_u32 s{sT1}, s{sBLK}, {xoff}""")
        ws = sreg(sWS)
        self.poll([f"buffer_load_dwordx4 v[8:11], v{vL16}, {ws}, s{sT1} offen sc1",
                   f"buffer_load_dwordx4 v[12:15], v{vL16}, {ws}, s{sT1} offen offset:1024 sc1",
                   f"buffer_load_dwordx2 v[16:17], v{T+2}, {ws}, s{sT1} offen offset:2048 sc1",
                   f"buffer_load_dword v36, v{T}, {ws}, s{sT1} offen sc1",
                   f"buffer_load_dword v37, v{T}, {ws}, s{sT1} offen offset:{o1} sc1",
                   f"buffer_load_dword v38, v{T+1}, {ws}, s{sT1} offen sc1"],
                  list(range(8, 18)) + [36, 37, 38], 39)

    def part_write(self):
        T = vT
        self(f"""v_lshrrev_b32 v{T}, 5, v{vLANE}
        v_mul_u32_u24 v{T}, 768, v{T}
        v_and_b32 v{T+1}, 7, v{vLANE}
        v_lshl_add_u32 v{T}, v{T+1}, 5, v{T}
        v_and_b32 v{T+1}, 16, v{vLANE}
        v_add_u32 v{T}, v{T}, v{T+1}
        s_mul_i32 s{sT0}, s{sWV}, 1536
        s_add_u32 s{sT0}, s{sT0}, {L_PART}
        v_add_u32 v{T}, s{sT0}, v{T}
        s_mov_b32 exec_lo, 0x00ff00ff
        s_mov_b32 exec_hi, 0xff00ff00
        ds_write_b128 v{T}, {vr(vACC)}
        ds_write_b128 v{T}, {vr(vACC+4)} offset:256
        ds_write_b128 v{T}, {vr(vACC+8)} offset:512
        s_mov_b64 exec, -1""")

    def part_read(self):
        self(f"v_lshlrev_b32 v30, 2, v{vLANE}\nv_add_u32 v30, {L_PART}, v30")
        for k in range(12):
            self(f"ds_read2st64_b32 v[{8+2*k}:{9+2*k}], v30 offset0:{2*k} offset1:{2*k+1}")

    def publish_y(self, nl, yoff, P, sprod):
        T = 32
        P64 = P * 64
        self(f"""v_bfe_u32 v{T}, v{vLANE}, 1, 2
        v_lshrrev_b32 v{T+1}, 5, v{vLANE}
        v_lshl_add_u32 v{T}, v{T+1}, 4, v{T}
        v_mul_u32_u24 v{T}, {P64}, v{T}
        v_and_b32 v{T+1}, 1, v{vLANE}
        v_lshl_add_u32 v{T}, v{T+1}, 5, v{T}
        v_and_b32 v{T+1}, 16, v{vLANE}
        v_add_u32 v{T}, v{T}, v{T+1}
        s_mul_i32 s{sT0}, s{sWV}, {4*P64}
        s_lshl_b32 s{sT1}, s{sprod}, 6
        s_add_u32 s{sT0}, s{sT0}, s{sT1}
        s_add_u32 s{sT0}, s{sT0}, s{sBLK}
        s_add_u32 s{sT0}, s{sT0}, {yoff}
        s_add_u32 s{sT1}, s{sT0}, {32*P64}""")
        for r in range(4):
            self(f"v_permlane32_swap_b32 v{vACC+r}, v{vACC+4+r}")
        if nl == 3:
            for r in range(4):
                self(f"v_permlane32_swap_b32 v{vACC+8+r}, v{20+r}")
        else:
            self("s_nop 0")
        for r in range(4):
            self(f"v_add_f32_dpp v{vACC+r}, v{vACC+4+r}, v{vACC+r} row_ror:8 row_mask:0xf bank_mask:0xf")
        if nl == 3:
            for r in range(4):
                self(f"v_add_f32_dpp v{vACC+8+r}, v{20+r}, v{vACC+8+r} row_ror:8 row_mask:0xf bank_mask:0xf")
        self(f"""s_mov_b32 exec_lo, 0x00ff00ff
        s_mov_b32 exec_hi, 0x00ff00ff
        buffer_store_dwordx4 {vr(vACC)}, v{T}, {sreg(sWS)}, s{sT0} offen sc1""")
        if nl == 3:
            self(f"""s_mov_b32 exec_hi, 0
            buffer_store_dwordx4 {vr(vACC+8)}, v{T}, {sreg(sWS)}, s{sT1} offen sc1""")
        self("s_mov_b64 exec, -1")

    def reducer(self, yoff, P, final_possible, xoff):
        nld = P // 64
        T = 32
        self(f"""s_sub_u32 s{sT3}, s2, {RED0}
        s_mul_i32 s{sT1}, s{sT3}, {P*64}
        s_lshl_b32 s{sT0}, s{sWV}, 10
        s_add_u32 s{sT1}, s{sT1}, s{sT0}
        s_add_u32 s{sT1}, s{sT1}, s{sBLK}
        s_add_u32 s{sT1}, s{sT1}, {yoff}""")
        for k in range(1, nld):
            self(f"v_add_u32 v{T+k}, {4096*k}, v{vL16}")
        lds = [f"buffer_load_dwordx4 {vr(8+4*k)}, v{vL16 if k == 0 else T+k}, {sreg(sWS)}, s{sT1} offen sc1" for k in range(nld)]
        self.poll(lds, list(range(8, 8 + 4 * nld)), 39)
        for k in range(1, nld):
            for r in range(4):
                self(f"v_add_f32 v{8+r}, v{8+r}, v{8+4*k+r}")
        self(f"""v_and_b32 v{T}, 3, v{vLANE}
        v_lshlrev_b32 v{T}, 4, v{T}
        v_permlane32_swap_b32 v8, v9
        v_permlane32_swap_b32 v10, v11
        v_lshrrev_b32 v{T+1}, 5, v{vLANE}
        v_lshl_add_u32 v{T}, v{T+1}, 2, v{T}
        v_add_f32 v8, v8, v9
        v_add_f32 v10, v10, v11
        v_and_b32 v{T+1}, 16, v{vLANE}
        v_lshrrev_b32 v{T+1}, 1, v{T+1}
        v_permlane16_swap_b32 v8, v10
        v_add_u32 v{T}, v{T}, v{T+1}
        s_lshl_b32 s{sT0}, s{sWV}, 6
        v_add_f32 v8, v8, v10
        s_add_u32 s{sT0}, s{sT0}, {L_RED}
        v_add_u32 v{T}, s{sT0}, v{T}
        v_add_f32_dpp v8, v8, v8 row_ror:4 row_mask:0xf bank_mask:0xf
        s_nop 1
        v_add_f32_dpp v8, v8, v8 row_ror:8 row_mask:0xf bank_mask:0xf
        ds_write_b32 v{T}, v8
        s_waitcnt lgkmcnt(0)
        s_barrier""")
        done = self.lab("L_reddone")
        self(f"""s_cmp_lg_u32 s{sWV}, 0
        s_cbranch_scc1 {done}
        s_mov_b64 exec, 0xf""")
        self(f"""v_add_u32 v{T}, {L_RED}, v{vL16}
        ds_read_b128 v[8:11], v{T}
        ds_read_b128 v[12:15], v{T} offset:64
        ds_read_b128 v[16:19], v{T} offset:128
        ds_read_b128 v[20:23], v{T} offset:192
        ds_read_b128 v[24:27], v{T} offset:{L_XK-L_RED}
        s_lshl_b32 s{sT0}, s{sT3}, 6
        s_add_u32 s{sT0}, s{sT0}, s{sBLK}
        s_add_u32 s{sT0}, s{sT0}, {xoff}
        s_waitcnt lgkmcnt(0)""")
        for r in range(4):
            self(f"v_add_f32 v{8+r}, v{8+r}, v{12+r}\nv_add_f32 v{16+r}, v{16+r}, v{20+r}")
        for r in range(4):
            self(f"v_add_f32 v{8+r}, v{8+r}, v{16+r}")
        for r in range(4):
            self.bf16r(8 + r, 8 + r)
        for r in range(4):
            self(f"v_add_f32 v{8+r}, v{8+r}, v{24+r}")
        if final_possible:
            nf = self.lab("L_notfinal")
            self(f"""s_cmp_eq_u32 s{sPASS}, 0
            s_cbranch_scc1 {nf}
            v_cvt_pk_bf16_f32 v12, v8, v9
            v_cvt_pk_bf16_f32 v13, v10, v11
            v_lshlrev_b32 v{T+1}, 3, v{vLANE}
            s_lshl_b32 s{sT0}, s{sT3}, 5
            buffer_store_dwordx2 v[12:13], v{T+1}, {sreg(sOUT)}, s{sT0} offen
            s_mov_b64 exec, -1
            s_branch {done}
            {nf}:""")
        for r in range(4):
            self.bf16r(8 + r, 8 + r)
        self(f"""buffer_store_dwordx4 v[8:11], v{vL16}, {sreg(sWS)}, s{sT0} offen sc1
        ds_write_b128 v{T}, v[8:11] offset:{L_XK-L_RED}
        s_waitcnt lgkmcnt(0)
        s_mov_b64 exec, -1
        {done}:""")

    def build(self):
        A = self.A
        T = vT
        g = self
        g("s_cmp_ge_u32 s2, 256\ns_cbranch_scc1 L_end")
        g.stamp(0)
        g(f"""s_load_dwordx2 s[{sX}:{sX+1}], s[0:1], 0
        s_load_dwordx2 s[{sK}:{sK+1}], s[0:1], 8
        s_load_dwordx2 s[{sV}:{sV+1}], s[0:1], 16
        s_load_dwordx2 s[{sWQ}:{sWQ+1}], s[0:1], 24
        s_load_dwordx2 s[{sWO}:{sWO+1}], s[0:1], 32
        s_load_dwordx2 s[{sW1}:{sW1+1}], s[0:1], 48
        s_load_dwordx2 s[{sW2}:{sW2+1}], s[0:1], 56
        s_load_dwordx2 s[{sOUT}:{sOUT+1}], s[0:1], 64
        s_load_dwordx2 s[{sDBG}:{sDBG+1}], s[0:1], 72
        s_load_dwordx2 s[{sWS}:{sWS+1}], s[0:1], 80
        v_lshrrev_b32 v1, 6, v0
        v_and_b32 v{vLANE}, 63, v0
        v_readfirstlane_b32 s{sWV}, v1""")
        for s, n in ((sX, 1280), (sK, HB), (sV, HB), (sWQ, 640*6144*2), (sWO, 6144*640*2), (sW1, 640*1536*2),
                     (sW2, 1536*640*2), (sOUT, 1280), (sDBG, 256), (sWS, WS_REC)):
            g(f"s_mov_b32 s{s+2}, {n}\ns_mov_b32 s{s+3}, 0x20000")
        if self.mapx == 0:
            g(f"s_lshr_b32 s{sH}, s2, 3\ns_and_b32 s{sS}, s2, 7")
        else:
            g(f"""s_and_b32 s{sH}, s2, 7
            s_lshl_b32 s{sH}, s{sH}, 2
            s_bfe_u32 s{sS}, s2, 0x20003
            s_add_u32 s{sH}, s{sH}, s{sS}
            s_lshr_b32 s{sS}, s2, 5""")
        g(f"""v_lshlrev_b32 v{vL16}, 4, v{vLANE}
        v_bfe_u32 v{vKO}, v{vLANE}, 1, 3
        v_mul_u32_u24 v{vKO}, 384, v{vKO}
        v_and_b32 v{T}, 1, v{vLANE}
        v_lshl_add_u32 v{vKO}, v{T}, 6, v{vKO}
        v_and_b32 v{T}, 48, v{vLANE}
        v_add_u32 v{vKO}, v{vKO}, v{T}
        v_lshrrev_b32 v{vVO}, 3, v{vLANE}
        v_mul_u32_u24 v{vVO}, 384, v{vVO}
        v_and_b32 v{T}, 7, v{vLANE}
        v_lshl_add_u32 v{vVO}, v{T}, 4, v{vVO}
        v_and_b32 v{T+1}, 1, v{vLANE}
        v_lshlrev_b32 v{T+1}, 4, v{T+1}
        v_mov_b32 v{T+2}, 0xffff
        v_lshlrev_b32 v{T+1}, v{T+1}, v{T+2}
        v_lshrrev_b32 v{T}, 1, v{T}""")
        for r in range(4):
            g(f"v_cmp_eq_u32 vcc, {r}, v{T}\ns_nop 1\nv_cndmask_b32 v{vMK+r}, 0, v{T+1}, vcc")
        g(f"""s_mov_b32 s{sPASS}, 0
        s_mov_b32 s{sBLK}, {W_B0}
        s_mov_b32 s{sQP}, {W_QP0}
        s_mul_i32 s{sWB}, s{sWV}, 9216
        s_cmp_eq_u32 s{sWV}, 3
        s_cselect_b32 s{sWB}, {WOFF[3]}, s{sWB}
        s_add_u32 s{sWB}, s{sWB}, {L_W}
        s_lshl_b32 s{sU0}, s{sS}, 2
        s_add_u32 s{sU0}, s{sU0}, s{sWV}
        s_mul_i32 s{sU0}, s{sU0}, {UB}
        s_mov_b32 s{sT5}, {TSTRIDE}
        s_mul_i32 s{sT0}, s{sH}, {HB}
        s_waitcnt lgkmcnt(0)
        s_add_u32 s{sK}, s{sK}, s{sT0}
        s_addc_u32 s{sK+1}, s{sK+1}, 0
        s_add_u32 s{sV}, s{sV}, s{sT0}
        s_addc_u32 s{sV+1}, s{sV+1}, 0""")
        nc = g.lab("L_noclr")
        g(f"""s_cmp_lg_u32 s{sWV}, 0
        s_cbranch_scc1 {nc}
        v_mov_b32 v8, -1
        v_mov_b32 v9, -1
        v_mov_b32 v10, -1
        v_mov_b32 v11, -1
        s_lshl_b32 s{sT0}, s2, 10
        buffer_store_dwordx4 v[8:11], v{vL16}, {sreg(sWS)}, s{sT0} offen sc1
        s_mul_i32 s{sT0}, s2, 12288
        s_add_u32 s{sT0}, s{sT0}, {W_CLR}""")
        for i in range(3):
            for j in range(4):
                g(f"buffer_store_dwordx4 v[8:11], v{vL16}, {sreg(sWS)}, s{sT0} offen offset:{1024*j} sc1")
            g(f"s_add_u32 s{sT0}, s{sT0}, 4096")
        g(f"{nc}:")
        g(f"""v_lshlrev_b32 v32, 3, v{vLANE}
        v_lshlrev_b32 v33, 2, v{vLANE}
        s_mul_i32 s{sT0}, s{sS}, 10
        s_add_u32 s{sT0}, s{sT0}, s{sWV}
        s_lshl_b32 s{sT0}, s{sT0}, 4
        v_lshrrev_b32 v34, 3, v{vLANE}
        v_lshl_add_u32 v34, v34, 1, s{sT0}
        buffer_load_dwordx2 v[20:21], v32, {sreg(sX)}, 0 offen
        buffer_load_dwordx2 v[22:23], v32, {sreg(sX)}, 0 offen offset:512
        buffer_load_dword v24, v33, {sreg(sX)}, 0 offen offset:1024
        buffer_load_ushort v36, v34, {sreg(sX)}, 0 offen
        buffer_load_ushort v37, v34, {sreg(sX)}, 0 offen offset:64
        buffer_load_ushort v38, v34, {sreg(sX)}, 0 offen offset:128""")
        g(f"""s_sub_u32 s{sT0}, s2, {RED0}
        s_lshl_b32 s{sT0}, s{sT0}, 5
        v_lshl_add_u32 v35, v{vLANE}, 1, s{sT0}
        buffer_load_ushort v39, v35, {sreg(sX)}, 0 offen""")
        g.dma_wq()
        lw0, lj = g.lab("L_w0"), g.lab("L_join")
        g(f"s_cmp_eq_u32 s{sWV}, 0\ns_cbranch_scc1 {lw0}")
        g(f"""s_sub_u32 s{sT0}, s{sWV}, 1
        s_lshl_b32 s{sT1}, s{sT0}, 7
        s_lshl_b32 s{sT0}, s{sT0}, 10
        s_mul_i32 s{sT2}, s{sS}, {4*UB}
        s_add_u32 s{sT1}, s{sT1}, s{sT2}""")
        for t in range(NLDS):
            for w in range(4):
                for kv in range(2):
                    srd, vo = (sK, vKO) if kv == 0 else (sV, vVO)
                    g(f"""s_add_u32 m0, s{sT0}, {L_UNITS + (w*NLDS+t)*6144 + kv*3072}
                    s_add_u32 s{sT2}, s{sT1}, {t*TSTRIDE + w*UB}
                    buffer_load_dwordx4 v{vo}, {sreg(srd)}, s{sT2} offen{self.pol} lds""")
        g(f"s_waitcnt vmcnt({8*NLDS})\ns_branch {lj}\n{lw0}:")
        g(f"""s_waitcnt vmcnt(0)
        s_mov_b32 s{sT0}, 1
        s_lshl_b32 s{sT1}, s{sH}, 3
        s_atomic_add s{sT0}, s[{sDBG}:{sDBG+1}], s{sT1}
        {lj}:""")
        for i in range(5):
            g(f"v_lshlrev_b32 v{8+2*i}, 16, v{20+i}\nv_and_b32 v{9+2*i}, 0xffff0000, v{20+i}")
        for i in range(3):
            g(f"v_lshlrev_b32 v{36+i}, 16, v{36+i}")
        g(f"""v_lshlrev_b32 v39, 16, v39
        v_lshlrev_b32 v35, 2, v{vLANE}
        v_add_u32 v35, {L_XK}, v35
        s_mov_b64 exec, 0xffff
        ds_write_b32 v35, v39
        s_mov_b64 exec, -1""")

        g("L_stageq:")
        g(f"v_add_u32 v39, s{sWB}, v{vL16}")
        for j in range(3):
            g(f"ds_read_b128 {ar(aQ+4*j)}, v39 offset:{j*1024}")
        for j in range(3):
            g(f"ds_read_b128 {vr(20+4*j)}, v39 offset:{(3+j)*1024}")
        g.ln()
        g.mkA(32, 36)
        g("s_waitcnt lgkmcnt(0)\ns_nop 0")
        for j in range(3):
            g(f"v_mfma_f32_16x16x32_bf16 {vr(vACC+4*j)}, v[32:35], {ar(aQ+4*j)}, 0")
        q2 = g.lab("L_q2")
        g(f"s_cmp_ge_u32 s{sWV}, 2\ns_cbranch_scc1 {q2}")
        for j in range(3):
            g(f"ds_read_b128 {ar(aQ+4*j)}, v39 offset:{(6+j)*1024}")
        g.mkA(32, 38)
        g("s_waitcnt lgkmcnt(0)\ns_nop 0")
        for j in range(3):
            g(f"v_mfma_f32_16x16x32_bf16 {vr(vACC+4*j)}, v[32:35], {ar(aQ+4*j)}, {vr(vACC+4*j)}")
        g(f"{q2}:")
        g.mkA(32, 37)
        g("s_nop 1")
        for j in range(3):
            g(f"v_mfma_f32_16x16x32_bf16 {vr(vACC+4*j)}, v[32:35], {vr(20+4*j)}, {vr(vACC+4*j)}")
        g.part_write()
        g("s_waitcnt lgkmcnt(0)\ns_barrier")
        g.stamp(9)
        qj = g.lab("L_qjoin")
        g(f"s_cmp_lg_u32 s{sWV}, 0\ns_cbranch_scc1 {qj}")
        g.part_read()
        g(f"""s_lshl_b32 s{sT0}, s{sH}, 3
        s_add_u32 s{sT1}, s{sT0}, s{sS}
        s_lshl_b32 s{sT0}, s{sT0}, 10
        s_lshl_b32 s{sT1}, s{sT1}, 10
        s_add_u32 s{sT0}, s{sT0}, s{sQP}
        s_add_u32 s{sT1}, s{sT1}, s{sQP}""")
        nb, sp = g.lab("L_nobar"), g.lab("L_bar")
        g(f"""s_cmp_lg_u32 s{sPASS}, 0
        s_cbranch_scc1 {nb}
        s_mov_b32 s{sCNT}, {SPIN}
        v_lshlrev_b32 v33, 3, v{vLANE}
        s_mov_b32 exec_hi, 0
        {sp}:
        buffer_load_dword v32, v33, {sreg(sDBG)}, 0 offen sc1
        s_waitcnt vmcnt(0)
        v_cmp_gt_u32 vcc, 8, v32
        s_cbranch_vccz {nb}
        s_sub_u32 s{sCNT}, s{sCNT}, 1
        s_cbranch_scc0 {sp}
        {nb}:
        s_mov_b64 exec, -1
        s_waitcnt lgkmcnt(0)""")
        for step in (12, 6, 3):
            for r in range(step):
                g(f"v_add_f32 v{8+r}, v{8+r}, v{8+step+r}")
        g(f"""v_mov_b32 v11, 0
        buffer_store_dwordx4 v[8:11], v{vL16}, {sreg(sWS)}, s{sT1} offen sc1
        v_add_u32 v32, 4096, v{vL16}
        s_nop 0""")
        g.poll([f"buffer_load_dwordx3 v[{8+4*k}:{10+4*k}], v{vL16 if k < 4 else 32}, {sreg(sWS)}, s{sT0} offen offset:{(k%4)*1024} sc1"
                if k < 6 else
                f"buffer_load_dwordx3 v[{34+4*(k-6) - (0 if k == 6 else 0)}:{36+4*(k-6)}], v32, {sreg(sWS)}, s{sT0} offen offset:{(k%4)*1024} sc1"
                for k in range(7)] +
               [f"buffer_load_dword v11, v32, {sreg(sWS)}, s{sT0} offen offset:3072 sc1",
                f"buffer_load_dword v15, v32, {sreg(sWS)}, s{sT0} offen offset:3076 sc1",
                f"buffer_load_dword v19, v32, {sreg(sWS)}, s{sT0} offen offset:3080 sc1"],
               [8+4*k+r for k in range(6) for r in range(3)] + [34, 35, 36, 11, 15, 19], 39)
        for r in range(3):
            g(f"""v_add_f32 v{8+r}, v{8+r}, v{12+r}
            v_add_f32 v{16+r}, v{16+r}, v{20+r}
            v_add_f32 v{24+r}, v{24+r}, v{28+r}
            v_add_f32 v{34+r}, v{34+r}, v{11+4*r}""")
        for r in range(3):
            g(f"v_add_f32 v{8+r}, v{8+r}, v{16+r}\nv_add_f32 v{24+r}, v{24+r}, v{34+r}")
        g(f"v_lshlrev_b32 v32, 1, v{vLANE}\nv_add_u32 v32, {L_QB}, v32")
        for r in range(3):
            g(f"v_add_f32 v{8+r}, v{8+r}, v{24+r}\nv_cvt_pk_bf16_f32 v{8+r}, v{8+r}, v{8+r}\nds_write_b16 v32, v{8+r} offset:{128*r}")
        g(f"s_waitcnt lgkmcnt(0)\n{qj}:")
        g("s_barrier")
        g(f"""v_and_b32 v32, 1, v{vLANE}
        v_lshlrev_b32 v32, 6, v32
        v_and_b32 v33, 48, v{vLANE}
        v_add_u32 v32, v32, v33
        v_add_u32 v32, {L_QB}, v32""")
        for j in range(3):
            g(f"ds_read_b128 {ar(aQ+4*j)}, v32 offset:{128*j}")
        g.init_softmax()
        g(f"""s_mul_i32 s{sT0}, s{sWV}, {NLDS*6144}
        v_add_u32 v{T+4}, s{sT0}, v{vL16}""")
        g.stamp(10)
        g(f"s_cmp_lg_u32 s{sPASS}, 0\ns_cbranch_scc1 L_p2start")

        NR1 = NUNIT - NLDS
        e1 = (-NR1) % NSLOT
        e1 = 0
        g(f"""s_add_u32 s{sKOFF}, s{sU0}, {NLDS*TSTRIDE}
        s_mov_b32 s{sVOFF}, s{sKOFF}""")
        for gi in range(A):
            g.issue_group((e1 + gi // 2) % NSLOT, gi % 2)
        g(f"s_waitcnt vmcnt({3*A})\ns_barrier")
        g.dma_wo()
        g(f"""s_mov_b32 s{sKREM}, {NR1 - (A+1)//2}
        s_mov_b32 s{sVREM}, {NR1 - A//2}
        s_mov_b32 s{sREM}, {NR1}""")
        g.lds_unit_read(0, 17)
        for t in range(NLDS):
            if t + 1 < NLDS:
                g.lds_unit_read(t + 1, 17 + (t + 1) % 2)
                g("s_waitcnt lgkmcnt(6)")
            else:
                g("s_waitcnt lgkmcnt(0)")
            g.qk(17 + t % 2)
            g("s_nop 1")
            g.pv(17 + t % 2)
        g.stamp(1)
        g(f"s_branch L_slot{e1}")

        g("L_p2start:")
        NR2 = NUNIT - NLDS - NSLOT
        if self.rev2:
            g(f"""s_add_u32 s{sKOFF}, s{sU0}, {(NLDS+NR2-1)*TSTRIDE}
            s_mov_b32 s{sT5}, {(-TSTRIDE) & 0xffffffff:#x}""")
        else:
            g(f"s_add_u32 s{sKOFF}, s{sU0}, {NLDS*TSTRIDE}")
        g(f"s_mov_b32 s{sVOFF}, s{sKOFF}\ns_waitcnt lgkmcnt(0)")
        pu = list(self.p2units)
        npre = len(pu)
        issued = 0
        for k in range(NSLOT):
            g.qk(k)
            g("s_nop 1")
            g.pv(k)
            if issued < npre and pu[issued] == k:
                g.issue_group(issued, 0)
                g.issue_group(issued, 1)
                issued += 1
            if k == 2:
                g.dma_wo()
            if k == NSLOT - 2:
                g.lds_unit_read(0, 16)
        for t in range(NLDS):
            if t + 1 < NLDS:
                g.lds_unit_read(t + 1, 16 + (t + 1) % 2)
                g("s_waitcnt lgkmcnt(6)")
            else:
                g("s_waitcnt lgkmcnt(0)")
            g.qk(16 + t % 2)
            g("s_nop 1")
            g.pv(16 + t % 2)
        gi = 2 * npre
        u = 0
        while gi < A:
            g.issue_group(gi // 2, gi % 2)
            gi += 1
        while gi - 2 * u > A:
            g(f"s_waitcnt vmcnt({3*(gi - 2*u - 1)})")
            g.qk(u)
            g(f"s_waitcnt vmcnt({3*(gi - 2*u - 2)})")
            if gi - 2 * u - 2 < A:
                g.issue_group(gi // 2, gi % 2)
                gi += 1
            g("s_nop 0")
            g.pv(u)
            u += 1
        assert gi - 2 * u == A
        g(f"""s_mov_b32 s{sKREM}, {NR2 - (gi+1)//2}
        s_mov_b32 s{sVREM}, {NR2 - gi//2}
        s_mov_b32 s{sREM}, {NR2 - u}""")
        g.stamp(1)
        g(f"s_branch L_slot{u}")

        g(".p2align 6")
        for k in range(NSLOT):
            g(f"L_slot{k}:")
            for kv in range(2):
                gidx = kv + A
                tslot = (k + gidx // 2) % NSLOT
                tkv = gidx % 2
                rem = sKREM if tkv == 0 else sVREM
                ni, cont = g.lab("L_noiss"), g.lab("L_cont")
                g(f"""s_waitcnt vmcnt({3*(A-1)})
                s_sub_u32 s{rem}, s{rem}, 1
                s_cbranch_scc1 {ni}""")
                g.issue_group(tslot, tkv)
                g(f"{cont}:")
                if kv == 0:
                    g.qk(k)
                else:
                    g.pv(k)
                self.tail = getattr(self, "tail", [])
                self.tail.append(f"{ni}:\ns_mov_b32 s{rem}, 0\ns_waitcnt vmcnt(0)\ns_branch {cont}")
            g(f"s_sub_u32 s{sREM}, s{sREM}, 1\ns_cmp_eq_u32 s{sREM}, 0\ns_cbranch_scc1 L_passend")
        g("s_branch L_slot0")
        for t in self.tail:
            g(t)
        g.rescale_sub()

        g("L_passend:")
        g.stamp(2)
        g(f"""v_add_f32_dpp v{vLS}, v{vLS}, v{vLS} row_ror:8 row_mask:0xf bank_mask:0xf
        s_nop 1
        v_add_f32_dpp v{vLS}, v{vLS}, v{vLS} row_bcast:15 row_mask:0xa bank_mask:0xf
        s_nop 1
        v_add_f32_dpp v{vLS}, v{vLS}, v{vLS} row_bcast:31 row_mask:0xc bank_mask:0xf
        v_sub_f32 v{vNEG}, 0, v{vNEG}
        s_lshl_b32 s{sT0}, s{sWV}, 3
        s_add_u32 s{sT0}, s{sT0}, {L_ML}
        v_mov_b32 v32, s{sT0}
        s_mov_b32 exec_lo, 0
        s_mov_b32 exec_hi, 0x80000000
        ds_write_b64 v32, v[{vNEG}:{vLS}]
        s_mov_b64 exec, -1""")
        g.part_write()
        g("s_waitcnt lgkmcnt(0)\ns_barrier")
        aj = g.lab("L_ajoin")
        g(f"s_cmp_lg_u32 s{sWV}, 0\ns_cbranch_scc1 {aj}")
        g(f"""v_mov_b32 v36, {L_ML}
        ds_read_b128 v[32:35], v36
        ds_read_b128 v[36:39], v36 offset:16""")
        g.part_read()
        g(f"""s_lshl_b32 s{sT0}, s{sH}, 13
        s_lshl_b32 s{sT1}, s{sS}, 7
        s_add_u32 s{sT0}, s{sT0}, s{sT1}
        s_add_u32 s{sT0}, s{sT0}, s{sBLK}
        s_waitcnt lgkmcnt(12)
        v_readfirstlane_b32 s{sF+4}, v33
        v_max3_f32 v33, v32, v34, v36
        v_max_f32 v33, v33, v38
        v_sub_f32 v32, v32, v33
        v_sub_f32 v34, v34, v33
        v_sub_f32 v36, v36, v33
        v_sub_f32 v38, v38, v33
        v_exp_f32 v32, v32
        v_exp_f32 v34, v34
        v_exp_f32 v36, v36
        v_exp_f32 v38, v38
        v_mul_f32 v35, v35, v34
        v_fmac_f32 v35, s{sF+4}, v32
        v_fmac_f32 v35, v37, v36
        v_fmac_f32 v35, v39, v38
        v_and_b32 v37, 1, v{vLANE}
        v_cmp_eq_u32 vcc, 1, v37
        v_lshrrev_b32 v37, 3, v{vLANE}
        v_and_b32 v39, 7, v{vLANE}
        v_cndmask_b32 v33, v33, v35, vcc
        v_lshlrev_b32 v37, 10, v37
        v_lshl_add_u32 v37, v39, 4, v37
        s_waitcnt lgkmcnt(0)""")
        for w in range(4):
            for j in range(3):
                g(f"v_add_f32 v{8+6*w+j}, v{8+6*w+j}, v{8+6*w+3+j}")
        for j in range(3):
            g(f"v_mul_f32 v{8+j}, v{8+j}, v32")
        for w in range(1, 4):
            for j in range(3):
                g(f"v_fmac_f32 v{8+j}, v{8+6*w+j}, v{32+2*w}")
        g(f"""v_mov_b32 v11, v33
        buffer_store_dwordx4 v[8:11], v37, {sreg(sWS)}, s{sT0} offen offset:{B_AP} sc1
        {aj}:""")
        g.stamp(3)

        def stage_wo(nl):
            g(f"v_add_u32 v39, s{sWB}, v{vL16}")
            for i in range(nl):
                g(f"ds_read_b128 {ar(aQ+4*i)}, v39 offset:{i*1024}")
            for i in range(nl):
                g(f"ds_read_b128 {vr(20+4*i)}, v39 offset:{(nl+i)*1024}")
            g(f"""v_and_b32 v36, 7, v{vLANE}
            v_lshlrev_b32 v36, 7, v36
            v_lshrrev_b32 v37, 3, v{vLANE}
            v_lshl_add_u32 v36, v37, 4, v36
            s_lshl_b32 s{sT0}, s{sH}, 3
            s_add_u32 s{sT0}, s{sT0}, s{sS}
            s_lshl_b32 s{sT0}, s{sT0}, 10
            s_add_u32 s{sT0}, s{sT0}, s{sBLK}""")
            g.poll([f"buffer_load_dwordx4 v[32:35], v36, {sreg(sWS)}, s{sT0} offen offset:{B_AP} sc1"], [32, 33, 34, 35], 37)
            g.stamp(4)
            dp = ("quad_perm:[1,0,3,2]", "quad_perm:[2,3,0,1]", "row_half_mirror")
            g(f"""v_mov_b32 v36, v35
            s_nop 1
            v_mov_b32_dpp v36, v35 row_ror:8 row_mask:0xf bank_mask:0xc
            v_mov_b32_dpp v35, v35 row_ror:8 row_mask:0xf bank_mask:0x3
            s_nop 0
            v_max_f32_dpp v37, v36, v36 {dp[0]} row_mask:0xf bank_mask:0xf
            s_nop 1
            v_max_f32_dpp v37, v37, v37 {dp[1]} row_mask:0xf bank_mask:0xf
            s_nop 1
            v_max_f32_dpp v37, v37, v37 {dp[2]} row_mask:0xf bank_mask:0xf
            v_sub_f32 v36, v36, v37
            v_exp_f32 v36, v36
            s_nop 0""")
            for r in range(4):
                g(f"v_mul_f32 v{32+r}, v{32+r}, v36")
            for d in dp:
                for r in range(4):
                    g(f"v_add_f32_dpp v{32+r}, v{32+r}, v{32+r} {d} row_mask:0xf bank_mask:0xf")
            g("v_rcp_f32 v35, v35\ns_nop 0")
            for j in range(3):
                g(f"v_mul_f32 v{32+j}, v{32+j}, v35\nv_cvt_pk_bf16_f32 v{36+j}, v{32+j}, v{32+j}")
            g.mkA(32, 36)
            g("s_waitcnt lgkmcnt(0)\ns_nop 0")
            for i in range(nl):
                g(f"v_mfma_f32_16x16x32_bf16 {vr(vACC+4*i)}, v[32:35], {ar(aQ+4*i)}, 0")
            for i in range(nl):
                g(f"ds_read_b128 {ar(aQ+4*i)}, v39 offset:{(2*nl+i)*1024}")
            g.mkA(32, 37)
            g("s_nop 1")
            for i in range(nl):
                g(f"v_mfma_f32_16x16x32_bf16 {vr(vACC+4*i)}, v[32:35], {vr(20+4*i)}, {vr(vACC+4*i)}")
            g.mkA(32, 38)
            g("s_waitcnt lgkmcnt(0)\ns_nop 0")
            for i in range(nl):
                g(f"v_mfma_f32_16x16x32_bf16 {vr(vACC+4*i)}, v[32:35], {ar(aQ+4*i)}, {vr(vACC+4*i)}")
            g.publish_y(nl, B_Y1, 256, 2)
        g.by_nl(stage_wo)
        g.stamp(5)
        g(f"s_cmp_ge_u32 s2, {NFFN}\ns_cbranch_scc1 L_notffn")

        g.ffn_index()
        g.dma_ffn()
        g("s_waitcnt vmcnt(0)")

        def stage_ffn(nl):
            g(f"v_add_u32 v39, s{sWB}, v{vL16}")
            for i in range(nl):
                g(f"ds_read_b128 {vr(20+4*i)}, v39 offset:{i*1024}")
            for i in range(nl):
                g(f"ds_read_b128 {ar(aQ+4*i)}, v39 offset:{(nl+i)*1024}")
            g.x_gather(B_X1, "ffn")
            g.stamp(6)
            g.ln()
            g("s_waitcnt lgkmcnt(0)")
            for i in range(nl):
                g(f"v_and_b32 v32, 0xffff, v{36+i}\nv_and_b32 v33, 0xffff0000, v{36+i}")
                for e in range(8):
                    c = f"v{8+e}" if i else "0"
                    g(f"v_dot2_f32_bf16 v{8+e}, v{20+4*i+e//2}, v{32+(e&1)}, {c}")
                g("s_nop 2")
            for e in range(4):
                g(f"v_permlane32_swap_b32 v{8+e}, v{12+e}")
            for e in range(4):
                g(f"v_add_f32 v{8+e}, v{8+e}, v{12+e}")
            g(f"""v_lshrrev_b32 v32, 3, v{vLANE}
            v_lshlrev_b32 v32, 4, v32
            v_permlane16_swap_b32 v8, v10
            v_permlane16_swap_b32 v9, v11
            v_add_u32 v32, {L_HP}, v32
            v_add_f32 v8, v8, v10
            v_add_f32 v9, v9, v11
            s_lshl_b32 s{sT0}, s{sWV}, 2
            v_add_u32 v33, s{sT0}, v32
            v_add_f32_dpp v10, v8, v8 row_ror:8 row_mask:0xf bank_mask:0x3
            s_nop 1
            v_add_f32_dpp v10, v9, v9 row_ror:8 row_mask:0xf bank_mask:0xc
            s_nop 1
            v_add_f32_dpp v10, v10, v10 quad_perm:[1,0,3,2] row_mask:0xf bank_mask:0xf
            s_nop 1
            v_add_f32_dpp v10, v10, v10 quad_perm:[2,3,0,1] row_mask:0xf bank_mask:0xf
            s_nop 1
            v_add_f32_dpp v10, v10, v10 row_half_mirror row_mask:0xf bank_mask:0xf
            ds_write_b32 v33, v10
            s_waitcnt lgkmcnt(0)
            s_barrier
            ds_read_b128 v[8:11], v32
            s_waitcnt lgkmcnt(0)
            v_add_f32 v8, v8, v9
            v_add_f32 v10, v10, v11
            v_add_f32 v8, v8, v10""")
            g.bf16r(8, 8)
            g(f"""v_mul_f32 v9, {NLOG2E:#x}, v8
            v_exp_f32 v9, v9
            s_nop 0
            v_add_f32 v9, 1.0, v9
            v_rcp_f32 v9, v9
            s_nop 0
            v_mul_f32 v8, v8, v9
            v_cvt_pk_bf16_f32 v36, v8, v8""")
            g.mkA(32, 36)
            g("s_nop 1")
            for i in range(nl):
                g(f"v_mfma_f32_16x16x32_bf16 {vr(vACC+4*i)}, v[32:35], {ar(aQ+4*i)}, 0")
            g.publish_y(nl, B_Y2, NFFN, sT3)
        g.by_nl(stage_ffn)
        g.stamp(7)
        g("s_branch L_toq")

        g("L_notffn:")
        g(f"s_cmp_ge_u32 s2, {RED0+NRED}\ns_cbranch_scc1 L_toq")
        g.reducer(B_Y1, 256, False, B_X1)
        g.stamp(6)
        nq = g.lab("L_nowq")
        g(f"s_cmp_lg_u32 s{sPASS}, 0\ns_cbranch_scc1 {nq}")
        g.dma_wq()
        g(f"{nq}:")
        g("s_barrier")
        g.reducer(B_Y2, NFFN, True, B_X2)
        g.stamp(7)
        g(f"s_cmp_lg_u32 s{sPASS}, 0\ns_cbranch_scc1 L_fin\ns_branch L_getx2")

        g("L_toq:")
        g(f"s_cmp_lg_u32 s{sPASS}, 0\ns_cbranch_scc1 L_fin")
        g.dma_wq()
        g("L_getx2:")
        g.x_gather(B_X2, "q")
        g.stamp(8)
        g.dump_stamps()
        g(f"""s_add_u32 s{sQP}, s{sBLK}, {B_QP}
        s_mov_b32 s{sBLK}, {W_B1}
        s_mov_b32 s{sPASS}, 1
        s_branch L_stageq""")
        g("L_fin:")
        g("s_waitcnt vmcnt(0)")
        g.stamp(8)
        g.dump_stamps()
        g("L_end:\ns_endpgm")

        out = HEADER + f"; @launch grid=(256,1,1) block=(256,1,1) lds={LDS_BYTES}\n"
        out += f'.amdgcn_target "amdgcn-amd-amdhsa--gfx950"\n.text\n.globl {KN}\n.p2align 8\n.type {KN},@function\n{KN}:\n'
        out += "\n".join(self.L) + "\n"
        out += f""".section .rodata,"a"
.p2align 6
.amdhsa_kernel {KN}
  .amdhsa_next_free_vgpr 512
  .amdhsa_next_free_sgpr 102
  .amdhsa_accum_offset 256
  .amdhsa_group_segment_fixed_size 0
  .amdhsa_kernarg_size 88
  .amdhsa_user_sgpr_count 2
  .amdhsa_user_sgpr_kernarg_segment_ptr 1
  .amdhsa_system_sgpr_workgroup_id_x 1
.end_amdhsa_kernel
"""
        return out


def parse(spec):
    kw = {}
    if spec:
        for kv in spec.split(","):
            k, v = kv.split("=")
            try:
                v = ast.literal_eval(v.replace(":", ","))
            except Exception:
                pass
            if k.endswith("pol"):
                v = "" if v == "def" else v.replace("+", " ")
            kw[k] = v
    return kw


if __name__ == "__main__":
    open(sys.argv[1], "w").write(Gen(**parse(sys.argv[2] if len(sys.argv) > 2 else "")).build())
```

```python
import sys, ast

KN = "interleave_layers__mha_block_cached__dense_activation_silu__decode_kernel"

HEADER = """; Kernarg layout for this problem (88 bytes, ptrs only, base s[0:1]):
"""

HB = 12582912
UB = 3072
TSTRIDE = 32 * UB
NUNIT = 128
NSLOT = 19
NLDS = 5
L_UNITS = 0
L_W = 4 * NLDS * 6144
L_S = L_W + 30720
L_PART = L_S
L_ML = L_PART + 6144
L_QB = L_ML + 64
L_RED = L_QB + 384
L_HP = L_RED + 256
L_XK = L_HP + 128
L_END = L_XK + 64
LDS_BYTES = 163840
assert L_END <= LDS_BYTES
WOFF = [0, 9216, 18432, 24576]
K1 = 1024
W_QP0 = 0
W_B0 = 256 * K1
B_AP = 0
B_Y1 = 256 * K1
B_Y2 = B_Y1 + 640 * K1
B_X1 = B_Y2 + 480 * K1
B_X2 = B_X1 + 4 * K1
B_QP = B_X2 + 4 * K1
B_SIZE = B_QP + 256 * K1
W_B1 = W_B0 + B_SIZE
W_CLR = W_B0
assert W_B1 + B_X2 <= W_CLR + 3072 * K1
W_STAMP = 4096 * K1
WS_REC = 8192 * K1
NRED = 40
RED0 = 192
NFFN = 192
SCALE = 0x3d93cd3a
LOG2E = 0x3fb8aa3b
NLOG2E = 0xbfb8aa3b
INV640 = 0x3acccccd
EPS = 0x3727c5ac
SPIN = 400000

sK, sV, sWS, sWQ, sWO, sW1, sW2, sX, sOUT, sDBG = 4, 8, 12, 16, 20, 24, 28, 32, 36, 40
sH, sS, sWV = 44, 45, 46
sKOFF, sVOFF = 47, 48
sKREM, sVREM = 49, 50
sREM = 51
sM = 52
sPASS = 53
sRET = 54
sBLK = 56
sQP = 57
sWB = 58
sCNT = 59
sT0, sT1, sT2, sT3, sT4, sT5 = 60, 61, 62, 63, 64, 65
sEX = 66
sU0 = 68
sF = 70
sST = 76

vLANE, vKO, vVO, vL16 = 0, 1, 2, 3
vMK = 4
vACC = 8
vD = 20
vP = 24
vNEG, vLS = 28, 29
vT = 30
aQ = 240


def sreg(n, k=4):
    return f"s[{n}:{n+k-1}]"


def vr(n, k=4):
    return f"v[{n}:{n+k-1}]" if k > 1 else f"v{n}"


def ar(n, k=4):
    return f"a[{n}:{n+k-1}]" if k > 1 else f"a{n}"


def slot_reg(k, i):
    if k < 9:
        return vr(40 + 24 * k + 4 * i)
    return ar(24 * (k - 9) + 4 * i)


class Gen:
    def __init__(self, A=2, mapx=1, pol="nt", stamps=False, wpol="nt", p2units=(0, 1, 7, 13), rev2=False, dbgst=False, dslots=(), dpol=""):
        self.dslots = tuple(dslots) if not isinstance(dslots, int) else (dslots,)
        self.dpol = (" " + dpol) if dpol else ""
        self.dbgst = dbgst
        self.L = []
        self.A = A
        self.mapx = mapx
        self.pol = (" " + pol) if pol else ""
        self.wpol = (" " + wpol) if wpol else ""
        self.stamps = stamps
        self.nst = 0
        self.uid = 0
        self.p2units = p2units
        self.rev2 = rev2

    def __call__(self, s):
        for line in s.strip("\n").split("\n"):
            line = line.strip()
            if line:
                self.L.append(line if line.endswith(":") else "    " + line)

    def lab(self, p="L"):
        self.uid += 1
        return f"{p}_{self.uid}"

    def stamp(self, idx):
        if self.stamps:
            assert idx < 12
            self(f"s_memrealtime s[{sST+2*idx}:{sST+2*idx+1}]")

    def dump_stamps(self):
        if not self.stamps:
            return
        self("s_waitcnt lgkmcnt(0)")
        self(f"v_mov_b32 v{vT}, 0")
        for i in range(12):
            self(f"v_writelane_b32 v{vT}, s{sST+2*i}, {i}")
        self(f"""s_getreg_b32 s{sT0}, hwreg(HW_REG_XCC_ID)
        v_writelane_b32 v{vT}, s{sT0}, 15
        s_lshl_b32 s{sT0}, s2, 2
        s_add_u32 s{sT0}, s{sT0}, s{sWV}
        s_lshl_b32 s{sT0}, s{sT0}, 1
        s_add_u32 s{sT0}, s{sT0}, s{sPASS}
        s_lshl_b32 s{sT0}, s{sT0}, 6
        s_add_u32 s{sT0}, s{sT0}, {W_STAMP}
        v_lshlrev_b32 v{vT+1}, 2, v{vLANE}
        s_mov_b64 exec, 0xffff
        buffer_store_dword v{vT}, v{vT+1}, {sreg(sWS)}, s{sT0} offen
        s_mov_b64 exec, -1
        s_waitcnt vmcnt(0)""")
        if self.dbgst:
            sk = self.lab("L_nodbg")
            self(f"""s_cmp_lg_u32 s2, 200
            s_cbranch_scc1 {sk}
            s_cmp_lg_u32 s{sWV}, 0
            s_cbranch_scc1 {sk}""")
            for i, k in enumerate((10, 1, 2, 8)):
                self(f"s_sub_u32 s{sT0}, s{sST+2*k}, s{sST}\nv_writelane_b32 v{vT}, s{sT0}, {i}")
            self(f"""v_lshlrev_b32 v{vT+1}, 3, v{vLANE}
            s_lshl_b32 s{sT0}, s{sPASS}, 5
            s_mov_b64 exec, 0xf
            buffer_store_dword v{vT}, v{vT+1}, {sreg(sDBG)}, s{sT0} offen offset:4
            s_mov_b64 exec, -1
            s_waitcnt vmcnt(0)
            {sk}:""")

    def poll(self, loads, regs, tmp):
        top, done = self.lab("L_poll"), self.lab("L_got")
        self(f"s_mov_b32 s{sCNT}, {SPIN}")
        self(f"{top}:")
        for ld in loads:
            self(ld)
        self("s_waitcnt vmcnt(0)")
        r = list(regs)
        if len(r) % 2 == 0:
            self(f"v_max_u32 v{tmp}, v{r[0]}, v{r[1]}")
            r = r[2:]
        else:
            self(f"v_max3_u32 v{tmp}, v{r[0]}, v{r[1]}, v{r[2]}")
            r = r[3:]
        while r:
            self(f"v_max3_u32 v{tmp}, v{tmp}, v{r[0]}, v{r[1]}")
            r = r[2:]
        self(f"""v_cmp_eq_u32 vcc, -1, v{tmp}
        s_cbranch_vccz {done}
        s_sub_u32 s{sCNT}, s{sCNT}, 1
        s_cbranch_scc0 {top}
        {done}:""")

    def bf16r(self, d, s):
        self(f"v_cvt_pk_bf16_f32 v{d}, v{s}, v{s}\nv_and_b32 v{d}, 0xffff0000, v{d}")

    def mkA(self, dst, src):
        for r in range(4):
            self(f"v_and_b32 v{dst+r}, v{vMK+r}, v{src}")

    def issue_group(self, slot, kv):
        srd, vo, so = (sK, vKO, sKOFF) if kv == 0 else (sV, vVO, sVOFF)
        for j in range(3):
            self(f"buffer_load_dwordx4 {slot_reg(slot, 3*kv+j)}, v{vo}, {sreg(srd)}, s{so} offen offset:{128*j}{self.dpol if slot in self.dslots else self.pol}")
        self(f"s_add_u32 s{so}, s{so}, s{sT5}")

    def qk(self, slot):
        T = vT
        self(f"""v_mfma_f32_16x16x32_bf16 {vr(vD)}, {slot_reg(slot,0)}, {ar(aQ)}, 0
        v_mfma_f32_16x16x32_bf16 {vr(vD)}, {slot_reg(slot,1)}, {ar(aQ+4)}, {vr(vD)}
        v_mfma_f32_16x16x32_bf16 {vr(vD)}, {slot_reg(slot,2)}, {ar(aQ+8)}, {vr(vD)}
        s_nop 7
        v_add_f32_dpp v{T}, v{vD+1}, v{vD} quad_perm:[1,0,3,2] row_mask:0xf bank_mask:0x3
        s_nop 1
        v_add_f32_dpp v{T}, v{vD+3}, v{vD+2} quad_perm:[1,0,3,2] row_mask:0xf bank_mask:0xc
        s_nop 1
        v_mov_b32_dpp v{T+1}, v{T} quad_perm:[0,0,2,2] row_mask:0xf bank_mask:0xf""")
        self.bf16r(T + 1, T + 1)
        self(f"v_mul_f32 v{T+1}, {SCALE:#x}, v{T+1}")
        self.bf16r(T + 1, T + 1)
        sk = self.lab("L_nors")
        self(f"""v_cmp_lt_f32 vcc, s{sM}, v{T+1}
        s_cbranch_vccz {sk}
        s_call_b64 s[{sRET}:{sRET+1}], L_rescale
        {sk}:
        v_fmamk_f32 v{T+1}, v{T+1}, {LOG2E:#x}, v{vNEG}
        v_exp_f32 v{T+1}, v{T+1}
        s_nop 0
        v_add_f32 v{vLS}, v{vLS}, v{T+1}
        v_cvt_pk_bf16_f32 v{T+1}, v{T+1}, v{T+1}""")
        self.mkA(vP, T + 1)

    def pv(self, slot):
        for j in range(3):
            self(f"v_mfma_f32_16x16x32_bf16 {vr(vACC+4*j)}, {vr(vP)}, {slot_reg(slot,3+j)}, {vr(vACC+4*j)}")

    def rescale_sub(self):
        T = vT
        self(f"""L_rescale:
        s_nop 1
        v_max_f32_dpp v{T+2}, v{T+1}, v{T+1} row_ror:8 row_mask:0xf bank_mask:0xf
        s_nop 1
        v_max_f32_dpp v{T+2}, v{T+2}, v{T+2} row_bcast:15 row_mask:0xa bank_mask:0xf
        s_nop 1
        v_max_f32_dpp v{T+2}, v{T+2}, v{T+2} row_bcast:31 row_mask:0xc bank_mask:0xf
        s_nop 1
        v_readlane_b32 s{sM}, v{T+2}, 63
        s_nop 1
        v_mov_b32 v{T+2}, s{sM}
        v_mul_f32 v{T+2}, {NLOG2E:#x}, v{T+2}
        v_sub_f32 v{T+3}, v{T+2}, v{vNEG}
        v_exp_f32 v{T+3}, v{T+3}
        v_mov_b32 v{vNEG}, v{T+2}
        v_mul_f32 v{vLS}, v{vLS}, v{T+3}""")
        for r in range(12):
            self(f"v_mul_f32 v{vACC+r}, v{vACC+r}, v{T+3}")
        self(f"s_setpc_b64 s[{sRET}:{sRET+1}]")

    def init_softmax(self):
        for r in range(12):
            self(f"v_mov_b32 v{vACC+r}, 0")
        self(f"""v_mov_b32 v{vLS}, 0
        v_mov_b32 v{vNEG}, 0x7f800000
        s_mov_b32 s{sM}, 0xff800000""")

    def lds_unit_read(self, t, slot):
        for i in range(6):
            self(f"ds_read_b128 {slot_reg(slot,i)}, v{vT+4} offset:{t*6144 + i*1024}")

    def dma_tiles(self, srd, vaddr, tiles):
        for lo, imm in tiles:
            self(f"""s_add_u32 m0, s{sWB}, {lo}
            s_add_u32 s{sT2}, s{sT1}, {imm}
            buffer_load_dwordx4 v{vaddr}, {sreg(srd)}, s{sT2} offen{self.wpol} lds""")

    def by_nl(self, fn):
        l2, le = self.lab("L_nl2"), self.lab("L_nle")
        self(f"s_cmp_ge_u32 s{sWV}, 2\ns_cbranch_scc1 {l2}")
        fn(3)
        self(f"s_branch {le}\n{l2}:")
        fn(2)
        self(f"{le}:")

    def dma_wq(self):
        T = vT
        self(f"""v_lshrrev_b32 v{T}, 3, v{vLANE}
        v_mul_u32_u24 v{T}, 12288, v{T}
        v_and_b32 v{T+1}, 7, v{vLANE}
        v_lshl_add_u32 v{T}, v{T+1}, 4, v{T}
        s_mul_i32 s{sT1}, s{sS}, 10
        s_add_u32 s{sT1}, s{sT1}, s{sWV}
        s_mul_i32 s{sT1}, s{sT1}, {8*12288}
        s_mul_i32 s{sT2}, s{sH}, 384
        s_add_u32 s{sT1}, s{sT1}, s{sT2}""")
        self.by_nl(lambda nl: self.dma_tiles(sWQ, T, [((i*3+j)*1024, i*32*12288 + j*128) for i in range(nl) for j in range(3)]))

    def dma_wo(self):
        T = vT
        self(f"""v_lshrrev_b32 v{T}, 3, v{vLANE}
        v_mul_u32_u24 v{T}, 1280, v{T}
        v_and_b32 v{T+1}, 7, v{vLANE}
        v_lshl_add_u32 v{T}, v{T+1}, 4, v{T}
        s_mul_i32 s{sT1}, s{sH}, 24
        s_add_u32 s{sT1}, s{sT1}, s{sS}
        s_mul_i32 s{sT1}, s{sT1}, {8*1280}
        s_lshl_b32 s{sT2}, s{sWV}, 7
        s_add_u32 s{sT1}, s{sT1}, s{sT2}""")
        self.by_nl(lambda nl: self.dma_tiles(sWO, T, [((j*nl+i)*1024, j*64*1280 + i*512) for j in range(3) for i in range(nl)]))

    def dma_ffn(self):
        T = vT
        self(f"""v_mul_u32_u24 v{T}, 3072, v{vLANE}
        s_mul_i32 s{sT1}, s{sWV}, {64*3072}
        s_lshl_b32 s{sT2}, s{sT3}, 4
        s_add_u32 s{sT1}, s{sT1}, s{sT2}""")
        self.by_nl(lambda nl: self.dma_tiles(sW1, T, [(i*1024, i*256*3072) for i in range(nl)]))
        self(f"""v_lshrrev_b32 v{T}, 3, v{vLANE}
        v_mul_u32_u24 v{T}, 1280, v{T}
        v_and_b32 v{T+1}, 7, v{vLANE}
        v_lshl_add_u32 v{T}, v{T+1}, 4, v{T}
        s_mul_i32 s{sT1}, s{sT3}, {8*1280}
        s_lshl_b32 s{sT2}, s{sWV}, 7
        s_add_u32 s{sT1}, s{sT1}, s{sT2}""")
        self.by_nl(lambda nl: self.dma_tiles(sW2, T, [((nl+i)*1024, i*512) for i in range(nl)]))

    def ffn_index(self):
        self(f"""s_and_b32 s{sT3}, s2, 7
        s_mul_i32 s{sT3}, s{sT3}, 24
        s_lshr_b32 s{sT2}, s2, 3
        s_add_u32 s{sT3}, s{sT3}, s{sT2}""")

    def ln(self):
        S1, S2, T = 18, 19, 32
        self(f"v_readfirstlane_b32 s{sT0}, v8\ns_nop 1")
        self(f"v_subrev_f32 v{S1}, s{sT0}, v8\nv_mul_f32 v{S2}, v{S1}, v{S1}")
        for i in range(1, 10):
            self(f"v_subrev_f32 v{T+(i&1)}, s{sT0}, v{8+i}\nv_add_f32 v{S1}, v{S1}, v{T+(i&1)}\nv_fmac_f32 v{S2}, v{T+(i&1)}, v{T+(i&1)}")
        self("s_nop 0")
        for d in ("quad_perm:[1,0,3,2] row_mask:0xf", "quad_perm:[2,3,0,1] row_mask:0xf", "row_half_mirror row_mask:0xf",
                  "row_mirror row_mask:0xf", "row_bcast:15 row_mask:0xa", "row_bcast:31 row_mask:0xc"):
            self(f"""s_nop 0
            v_add_f32_dpp v{S1}, v{S1}, v{S1} {d} bank_mask:0xf
            v_add_f32_dpp v{S2}, v{S2}, v{S2} {d} bank_mask:0xf""")
        self(f"""s_nop 0
        v_readlane_b32 s{sT1}, v{S1}, 63
        v_readlane_b32 s{sT2}, v{S2}, 63
        v_mov_b32 v{T}, {INV640:#x}
        s_nop 0
        v_mul_f32 v{S1}, s{sT1}, v{T}
        v_mul_f32 v{S2}, s{sT2}, v{T}
        v_fma_f32 v{S2}, -v{S1}, v{S1}, v{S2}
        v_max_f32 v{S2}, 0, v{S2}
        v_add_f32 v{S1}, s{sT0}, v{S1}""")
        self.bf16r(S1, S1)
        self.bf16r(S2, S2)
        self(f"v_add_f32 v{S2}, {EPS:#x}, v{S2}")
        self.bf16r(S2, S2)
        self(f"v_sqrt_f32 v{S2}, v{S2}\ns_nop 0")
        self.bf16r(S2, S2)
        self(f"v_rcp_f32 v{S2}, v{S2}")
        for i in range(3):
            self(f"v_sub_f32 v{36+i}, v{36+i}, v{S1}")
            self.bf16r(36 + i, 36 + i)
        for i in range(3):
            self(f"v_mul_f32 v{36+i}, v{36+i}, v{S2}\nv_cvt_pk_bf16_f32 v{36+i}, v{36+i}, v{36+i}")

    def x_gather(self, xoff, mode):
        T = 32
        if mode == "ffn":
            self(f"""s_lshl_b32 s{sT0}, s{sWV}, 8
            v_lshl_add_u32 v{T}, v{vLANE}, 2, s{sT0}
            s_cmp_lt_u32 s{sWV}, 2
            s_cselect_b32 s{sT0}, 2, 1
            s_lshl_b32 s{sT0}, s{sT0}, 10""")
            o1 = 1024
        else:
            self(f"""s_mul_i32 s{sT0}, s{sS}, 10
            s_add_u32 s{sT0}, s{sT0}, s{sWV}
            s_lshl_b32 s{sT0}, s{sT0}, 5
            v_lshrrev_b32 v{T}, 3, v{vLANE}
            v_lshl_add_u32 v{T}, v{T}, 2, s{sT0}
            s_cmp_lt_u32 s{sWV}, 2
            s_cselect_b32 s{sT0}, 2, 1
            s_lshl_b32 s{sT0}, s{sT0}, 7""")
            o1 = 128
        self(f"""v_add_u32 v{T+1}, s{sT0}, v{T}
        v_lshlrev_b32 v{T+2}, 3, v{vLANE}
        s_add_u32 s{sT1}, s{sBLK}, {xoff}""")
        ws = sreg(sWS)
        self.poll([f"buffer_load_dwordx4 v[8:11], v{vL16}, {ws}, s{sT1} offen sc1",
                   f"buffer_load_dwordx4 v[12:15], v{vL16}, {ws}, s{sT1} offen offset:1024 sc1",
                   f"buffer_load_dwordx2 v[16:17], v{T+2}, {ws}, s{sT1} offen offset:2048 sc1",
                   f"buffer_load_dword v36, v{T}, {ws}, s{sT1} offen sc1",
                   f"buffer_load_dword v37, v{T}, {ws}, s{sT1} offen offset:{o1} sc1",
                   f"buffer_load_dword v38, v{T+1}, {ws}, s{sT1} offen sc1"],
                  list(range(8, 18)) + [36, 37, 38], 39)

    def part_write(self):
        T = vT
        self(f"""v_lshrrev_b32 v{T}, 5, v{vLANE}
        v_mul_u32_u24 v{T}, 768, v{T}
        v_and_b32 v{T+1}, 7, v{vLANE}
        v_lshl_add_u32 v{T}, v{T+1}, 5, v{T}
        v_and_b32 v{T+1}, 16, v{vLANE}
        v_add_u32 v{T}, v{T}, v{T+1}
        s_mul_i32 s{sT0}, s{sWV}, 1536
        s_add_u32 s{sT0}, s{sT0}, {L_PART}
        v_add_u32 v{T}, s{sT0}, v{T}
        s_mov_b32 exec_lo, 0x00ff00ff
        s_mov_b32 exec_hi, 0xff00ff00
        ds_write_b128 v{T}, {vr(vACC)}
        ds_write_b128 v{T}, {vr(vACC+4)} offset:256
        ds_write_b128 v{T}, {vr(vACC+8)} offset:512
        s_mov_b64 exec, -1""")

    def part_read(self):
        self(f"v_lshlrev_b32 v30, 2, v{vLANE}\nv_add_u32 v30, {L_PART}, v30")
        for k in range(12):
            self(f"ds_read2st64_b32 v[{8+2*k}:{9+2*k}], v30 offset0:{2*k} offset1:{2*k+1}")

    def publish_y(self, nl, yoff, P, sprod):
        T = 32
        P64 = P * 64
        self(f"""v_bfe_u32 v{T}, v{vLANE}, 1, 2
        v_lshrrev_b32 v{T+1}, 5, v{vLANE}
        v_lshl_add_u32 v{T}, v{T+1}, 4, v{T}
        v_mul_u32_u24 v{T}, {P64}, v{T}
        v_and_b32 v{T+1}, 1, v{vLANE}
        v_lshl_add_u32 v{T}, v{T+1}, 5, v{T}
        v_and_b32 v{T+1}, 16, v{vLANE}
        v_add_u32 v{T}, v{T}, v{T+1}
        s_mul_i32 s{sT0}, s{sWV}, {4*P64}
        s_lshl_b32 s{sT1}, s{sprod}, 6
        s_add_u32 s{sT0}, s{sT0}, s{sT1}
        s_add_u32 s{sT0}, s{sT0}, s{sBLK}
        s_add_u32 s{sT0}, s{sT0}, {yoff}
        s_add_u32 s{sT1}, s{sT0}, {32*P64}""")
        for r in range(4):
            self(f"v_permlane32_swap_b32 v{vACC+r}, v{vACC+4+r}")
        if nl == 3:
            for r in range(4):
                self(f"v_permlane32_swap_b32 v{vACC+8+r}, v{20+r}")
        else:
            self("s_nop 0")
        for r in range(4):
            self(f"v_add_f32_dpp v{vACC+r}, v{vACC+4+r}, v{vACC+r} row_ror:8 row_mask:0xf bank_mask:0xf")
        if nl == 3:
            for r in range(4):
                self(f"v_add_f32_dpp v{vACC+8+r}, v{20+r}, v{vACC+8+r} row_ror:8 row_mask:0xf bank_mask:0xf")
        self(f"""s_mov_b32 exec_lo, 0x00ff00ff
        s_mov_b32 exec_hi, 0x00ff00ff
        buffer_store_dwordx4 {vr(vACC)}, v{T}, {sreg(sWS)}, s{sT0} offen sc1""")
        if nl == 3:
            self(f"""s_mov_b32 exec_hi, 0
            buffer_store_dwordx4 {vr(vACC+8)}, v{T}, {sreg(sWS)}, s{sT1} offen sc1""")
        self("s_mov_b64 exec, -1")

    def reducer(self, yoff, P, final_possible, xoff):
        nld = P // 64
        T = 32
        self(f"""s_sub_u32 s{sT3}, s2, {RED0}
        s_mul_i32 s{sT1}, s{sT3}, {P*64}
        s_lshl_b32 s{sT0}, s{sWV}, 10
        s_add_u32 s{sT1}, s{sT1}, s{sT0}
        s_add_u32 s{sT1}, s{sT1}, s{sBLK}
        s_add_u32 s{sT1}, s{sT1}, {yoff}""")
        for k in range(1, nld):
            self(f"v_add_u32 v{T+k}, {4096*k}, v{vL16}")
        lds = [f"buffer_load_dwordx4 {vr(8+4*k)}, v{vL16 if k == 0 else T+k}, {sreg(sWS)}, s{sT1} offen sc1" for k in range(nld)]
        self.poll(lds, list(range(8, 8 + 4 * nld)), 39)
        for k in range(1, nld):
            for r in range(4):
                self(f"v_add_f32 v{8+r}, v{8+r}, v{8+4*k+r}")
        self(f"""v_and_b32 v{T}, 3, v{vLANE}
        v_lshlrev_b32 v{T}, 4, v{T}
        v_permlane32_swap_b32 v8, v9
        v_permlane32_swap_b32 v10, v11
        v_lshrrev_b32 v{T+1}, 5, v{vLANE}
        v_lshl_add_u32 v{T}, v{T+1}, 2, v{T}
        v_add_f32 v8, v8, v9
        v_add_f32 v10, v10, v11
        v_and_b32 v{T+1}, 16, v{vLANE}
        v_lshrrev_b32 v{T+1}, 1, v{T+1}
        v_permlane16_swap_b32 v8, v10
        v_add_u32 v{T}, v{T}, v{T+1}
        s_lshl_b32 s{sT0}, s{sWV}, 6
        v_add_f32 v8, v8, v10
        s_add_u32 s{sT0}, s{sT0}, {L_RED}
        v_add_u32 v{T}, s{sT0}, v{T}
        v_add_f32_dpp v8, v8, v8 row_ror:4 row_mask:0xf bank_mask:0xf
        s_nop 1
        v_add_f32_dpp v8, v8, v8 row_ror:8 row_mask:0xf bank_mask:0xf
        ds_write_b32 v{T}, v8
        s_waitcnt lgkmcnt(0)
        s_barrier""")
        done = self.lab("L_reddone")
        self(f"""s_cmp_lg_u32 s{sWV}, 0
        s_cbranch_scc1 {done}
        s_mov_b64 exec, 0xf""")
        self(f"""v_add_u32 v{T}, {L_RED}, v{vL16}
        ds_read_b128 v[8:11], v{T}
        ds_read_b128 v[12:15], v{T} offset:64
        ds_read_b128 v[16:19], v{T} offset:128
        ds_read_b128 v[20:23], v{T} offset:192
        ds_read_b128 v[24:27], v{T} offset:{L_XK-L_RED}
        s_lshl_b32 s{sT0}, s{sT3}, 6
        s_add_u32 s{sT0}, s{sT0}, s{sBLK}
        s_add_u32 s{sT0}, s{sT0}, {xoff}
        s_waitcnt lgkmcnt(0)""")
        for r in range(4):
            self(f"v_add_f32 v{8+r}, v{8+r}, v{12+r}\nv_add_f32 v{16+r}, v{16+r}, v{20+r}")
        for r in range(4):
            self(f"v_add_f32 v{8+r}, v{8+r}, v{16+r}")
        for r in range(4):
            self.bf16r(8 + r, 8 + r)
        for r in range(4):
            self(f"v_add_f32 v{8+r}, v{8+r}, v{24+r}")
        if final_possible:
            nf = self.lab("L_notfinal")
            self(f"""s_cmp_eq_u32 s{sPASS}, 0
            s_cbranch_scc1 {nf}
            v_cvt_pk_bf16_f32 v12, v8, v9
            v_cvt_pk_bf16_f32 v13, v10, v11
            v_lshlrev_b32 v{T+1}, 3, v{vLANE}
            s_lshl_b32 s{sT0}, s{sT3}, 5
            buffer_store_dwordx2 v[12:13], v{T+1}, {sreg(sOUT)}, s{sT0} offen
            s_mov_b64 exec, -1
            s_branch {done}
            {nf}:""")
        for r in range(4):
            self.bf16r(8 + r, 8 + r)
        self(f"""buffer_store_dwordx4 v[8:11], v{vL16}, {sreg(sWS)}, s{sT0} offen sc1
        ds_write_b128 v{T}, v[8:11] offset:{L_XK-L_RED}
        s_waitcnt lgkmcnt(0)
        s_mov_b64 exec, -1
        {done}:""")

    def build(self):
        A = self.A
        T = vT
        g = self
        g("s_cmp_ge_u32 s2, 256\ns_cbranch_scc1 L_end")
        g.stamp(0)
        g(f"""s_load_dwordx2 s[{sX}:{sX+1}], s[0:1], 0
        s_load_dwordx2 s[{sK}:{sK+1}], s[0:1], 8
        s_load_dwordx2 s[{sV}:{sV+1}], s[0:1], 16
        s_load_dwordx2 s[{sWQ}:{sWQ+1}], s[0:1], 24
        s_load_dwordx2 s[{sWO}:{sWO+1}], s[0:1], 32
        s_load_dwordx2 s[{sW1}:{sW1+1}], s[0:1], 48
        s_load_dwordx2 s[{sW2}:{sW2+1}], s[0:1], 56
        s_load_dwordx2 s[{sOUT}:{sOUT+1}], s[0:1], 64
        s_load_dwordx2 s[{sDBG}:{sDBG+1}], s[0:1], 72
        s_load_dwordx2 s[{sWS}:{sWS+1}], s[0:1], 80
        v_lshrrev_b32 v1, 6, v0
        v_and_b32 v{vLANE}, 63, v0
        v_readfirstlane_b32 s{sWV}, v1""")
        for s, n in ((sX, 1280), (sK, HB), (sV, HB), (sWQ, 640*6144*2), (sWO, 6144*640*2), (sW1, 640*1536*2),
                     (sW2, 1536*640*2), (sOUT, 1280), (sDBG, 256), (sWS, WS_REC)):
            g(f"s_mov_b32 s{s+2}, {n}\ns_mov_b32 s{s+3}, 0x20000")
        if self.mapx == 0:
            g(f"s_lshr_b32 s{sH}, s2, 3\ns_and_b32 s{sS}, s2, 7")
        else:
            g(f"""s_and_b32 s{sH}, s2, 7
            s_lshl_b32 s{sH}, s{sH}, 2
            s_bfe_u32 s{sS}, s2, 0x20003
            s_add_u32 s{sH}, s{sH}, s{sS}
            s_lshr_b32 s{sS}, s2, 5""")
        g(f"""v_lshlrev_b32 v{vL16}, 4, v{vLANE}
        v_bfe_u32 v{vKO}, v{vLANE}, 1, 3
        v_mul_u32_u24 v{vKO}, 384, v{vKO}
        v_and_b32 v{T}, 1, v{vLANE}
        v_lshl_add_u32 v{vKO}, v{T}, 6, v{vKO}
        v_and_b32 v{T}, 48, v{vLANE}
        v_add_u32 v{vKO}, v{vKO}, v{T}
        v_lshrrev_b32 v{vVO}, 3, v{vLANE}
        v_mul_u32_u24 v{vVO}, 384, v{vVO}
        v_and_b32 v{T}, 7, v{vLANE}
        v_lshl_add_u32 v{vVO}, v{T}, 4, v{vVO}
        v_and_b32 v{T+1}, 1, v{vLANE}
        v_lshlrev_b32 v{T+1}, 4, v{T+1}
        v_mov_b32 v{T+2}, 0xffff
        v_lshlrev_b32 v{T+1}, v{T+1}, v{T+2}
        v_lshrrev_b32 v{T}, 1, v{T}""")
        for r in range(4):
            g(f"v_cmp_eq_u32 vcc, {r}, v{T}\ns_nop 1\nv_cndmask_b32 v{vMK+r}, 0, v{T+1}, vcc")
        g(f"""s_mov_b32 s{sPASS}, 0
        s_mov_b32 s{sBLK}, {W_B0}
        s_mov_b32 s{sQP}, {W_QP0}
        s_mul_i32 s{sWB}, s{sWV}, 9216
        s_cmp_eq_u32 s{sWV}, 3
        s_cselect_b32 s{sWB}, {WOFF[3]}, s{sWB}
        s_add_u32 s{sWB}, s{sWB}, {L_W}
        s_lshl_b32 s{sU0}, s{sS}, 2
        s_add_u32 s{sU0}, s{sU0}, s{sWV}
        s_mul_i32 s{sU0}, s{sU0}, {UB}
        s_mov_b32 s{sT5}, {TSTRIDE}
        s_mul_i32 s{sT0}, s{sH}, {HB}
        s_waitcnt lgkmcnt(0)
        s_add_u32 s{sK}, s{sK}, s{sT0}
        s_addc_u32 s{sK+1}, s{sK+1}, 0
        s_add_u32 s{sV}, s{sV}, s{sT0}
        s_addc_u32 s{sV+1}, s{sV+1}, 0""")
        nc = g.lab("L_noclr")
        g(f"""s_cmp_lg_u32 s{sWV}, 0
        s_cbranch_scc1 {nc}
        v_mov_b32 v8, -1
        v_mov_b32 v9, -1
        v_mov_b32 v10, -1
        v_mov_b32 v11, -1
        s_lshl_b32 s{sT0}, s2, 10
        buffer_store_dwordx4 v[8:11], v{vL16}, {sreg(sWS)}, s{sT0} offen sc1
        s_mul_i32 s{sT0}, s2, 12288
        s_add_u32 s{sT0}, s{sT0}, {W_CLR}""")
        for i in range(3):
            for j in range(4):
                g(f"buffer_store_dwordx4 v[8:11], v{vL16}, {sreg(sWS)}, s{sT0} offen offset:{1024*j} sc1")
            g(f"s_add_u32 s{sT0}, s{sT0}, 4096")
        g(f"{nc}:")
        g(f"""v_lshlrev_b32 v32, 3, v{vLANE}
        v_lshlrev_b32 v33, 2, v{vLANE}
        s_mul_i32 s{sT0}, s{sS}, 10
        s_add_u32 s{sT0}, s{sT0}, s{sWV}
        s_lshl_b32 s{sT0}, s{sT0}, 4
        v_lshrrev_b32 v34, 3, v{vLANE}
        v_lshl_add_u32 v34, v34, 1, s{sT0}
        buffer_load_dwordx2 v[20:21], v32, {sreg(sX)}, 0 offen
        buffer_load_dwordx2 v[22:23], v32, {sreg(sX)}, 0 offen offset:512
        buffer_load_dword v24, v33, {sreg(sX)}, 0 offen offset:1024
        buffer_load_ushort v36, v34, {sreg(sX)}, 0 offen
        buffer_load_ushort v37, v34, {sreg(sX)}, 0 offen offset:64
        buffer_load_ushort v38, v34, {sreg(sX)}, 0 offen offset:128""")
        g(f"""s_sub_u32 s{sT0}, s2, {RED0}
        s_lshl_b32 s{sT0}, s{sT0}, 5
        v_lshl_add_u32 v35, v{vLANE}, 1, s{sT0}
        buffer_load_ushort v39, v35, {sreg(sX)}, 0 offen""")
        g.dma_wq()
        lw0, lj = g.lab("L_w0"), g.lab("L_join")
        g(f"s_cmp_eq_u32 s{sWV}, 0\ns_cbranch_scc1 {lw0}")
        g(f"""s_sub_u32 s{sT0}, s{sWV}, 1
        s_lshl_b32 s{sT1}, s{sT0}, 7
        s_lshl_b32 s{sT0}, s{sT0}, 10
        s_mul_i32 s{sT2}, s{sS}, {4*UB}
        s_add_u32 s{sT1}, s{sT1}, s{sT2}""")
        for t in range(NLDS):
            for w in range(4):
                for kv in range(2):
                    srd, vo = (sK, vKO) if kv == 0 else (sV, vVO)
                    g(f"""s_add_u32 m0, s{sT0}, {L_UNITS + (w*NLDS+t)*6144 + kv*3072}
                    s_add_u32 s{sT2}, s{sT1}, {t*TSTRIDE + w*UB}
                    buffer_load_dwordx4 v{vo}, {sreg(srd)}, s{sT2} offen{self.pol} lds""")
        g(f"s_waitcnt vmcnt({8*NLDS})\ns_branch {lj}\n{lw0}:")
        g(f"""s_waitcnt vmcnt(0)
        s_mov_b32 s{sT0}, 1
        s_lshl_b32 s{sT1}, s{sH}, 3
        s_atomic_add s{sT0}, s[{sDBG}:{sDBG+1}], s{sT1}
        {lj}:""")
        for i in range(5):
            g(f"v_lshlrev_b32 v{8+2*i}, 16, v{20+i}\nv_and_b32 v{9+2*i}, 0xffff0000, v{20+i}")
        for i in range(3):
            g(f"v_lshlrev_b32 v{36+i}, 16, v{36+i}")
        g(f"""v_lshlrev_b32 v39, 16, v39
        v_lshlrev_b32 v35, 2, v{vLANE}
        v_add_u32 v35, {L_XK}, v35
        s_mov_b64 exec, 0xffff
        ds_write_b32 v35, v39
        s_mov_b64 exec, -1""")

        g("L_stageq:")
        g(f"v_add_u32 v39, s{sWB}, v{vL16}")
        for j in range(3):
            g(f"ds_read_b128 {ar(aQ+4*j)}, v39 offset:{j*1024}")
        for j in range(3):
            g(f"ds_read_b128 {vr(20+4*j)}, v39 offset:{(3+j)*1024}")
        g.ln()
        g.mkA(32, 36)
        g("s_waitcnt lgkmcnt(0)\ns_nop 0")
        for j in range(3):
            g(f"v_mfma_f32_16x16x32_bf16 {vr(vACC+4*j)}, v[32:35], {ar(aQ+4*j)}, 0")
        q2 = g.lab("L_q2")
        g(f"s_cmp_ge_u32 s{sWV}, 2\ns_cbranch_scc1 {q2}")
        for j in range(3):
            g(f"ds_read_b128 {ar(aQ+4*j)}, v39 offset:{(6+j)*1024}")
        g.mkA(32, 38)
        g("s_waitcnt lgkmcnt(0)\ns_nop 0")
        for j in range(3):
            g(f"v_mfma_f32_16x16x32_bf16 {vr(vACC+4*j)}, v[32:35], {ar(aQ+4*j)}, {vr(vACC+4*j)}")
        g(f"{q2}:")
        g.mkA(32, 37)
        g("s_nop 1")
        for j in range(3):
            g(f"v_mfma_f32_16x16x32_bf16 {vr(vACC+4*j)}, v[32:35], {vr(20+4*j)}, {vr(vACC+4*j)}")
        g.part_write()
        g("s_waitcnt lgkmcnt(0)\ns_barrier")
        g.stamp(9)
        qj = g.lab("L_qjoin")
        g(f"s_cmp_lg_u32 s{sWV}, 0\ns_cbranch_scc1 {qj}")
        g.part_read()
        g(f"""s_lshl_b32 s{sT0}, s{sH}, 3
        s_add_u32 s{sT1}, s{sT0}, s{sS}
        s_lshl_b32 s{sT0}, s{sT0}, 10
        s_lshl_b32 s{sT1}, s{sT1}, 10
        s_add_u32 s{sT0}, s{sT0}, s{sQP}
        s_add_u32 s{sT1}, s{sT1}, s{sQP}""")
        nb, sp = g.lab("L_nobar"), g.lab("L_bar")
        g(f"""s_cmp_lg_u32 s{sPASS}, 0
        s_cbranch_scc1 {nb}
        s_mov_b32 s{sCNT}, {SPIN}
        v_lshlrev_b32 v33, 3, v{vLANE}
        s_mov_b32 exec_hi, 0
        {sp}:
        buffer_load_dword v32, v33, {sreg(sDBG)}, 0 offen sc1
        s_waitcnt vmcnt(0)
        v_cmp_gt_u32 vcc, 8, v32
        s_cbranch_vccz {nb}
        s_sub_u32 s{sCNT}, s{sCNT}, 1
        s_cbranch_scc0 {sp}
        {nb}:
        s_mov_b64 exec, -1
        s_waitcnt lgkmcnt(0)""")
        for step in (12, 6, 3):
            for r in range(step):
                g(f"v_add_f32 v{8+r}, v{8+r}, v{8+step+r}")
        g(f"""v_mov_b32 v11, 0
        buffer_store_dwordx4 v[8:11], v{vL16}, {sreg(sWS)}, s{sT1} offen sc1
        v_add_u32 v32, 4096, v{vL16}
        s_nop 0""")
        g.poll([f"buffer_load_dwordx3 v[{8+4*k}:{10+4*k}], v{vL16 if k < 4 else 32}, {sreg(sWS)}, s{sT0} offen offset:{(k%4)*1024} sc1"
                if k < 6 else
                f"buffer_load_dwordx3 v[{34+4*(k-6) - (0 if k == 6 else 0)}:{36+4*(k-6)}], v32, {sreg(sWS)}, s{sT0} offen offset:{(k%4)*1024} sc1"
                for k in range(7)] +
               [f"buffer_load_dword v11, v32, {sreg(sWS)}, s{sT0} offen offset:3072 sc1",
                f"buffer_load_dword v15, v32, {sreg(sWS)}, s{sT0} offen offset:3076 sc1",
                f"buffer_load_dword v19, v32, {sreg(sWS)}, s{sT0} offen offset:3080 sc1"],
               [8+4*k+r for k in range(6) for r in range(3)] + [34, 35, 36, 11, 15, 19], 39)
        for r in range(3):
            g(f"""v_add_f32 v{8+r}, v{8+r}, v{12+r}
            v_add_f32 v{16+r}, v{16+r}, v{20+r}
            v_add_f32 v{24+r}, v{24+r}, v{28+r}
            v_add_f32 v{34+r}, v{34+r}, v{11+4*r}""")
        for r in range(3):
            g(f"v_add_f32 v{8+r}, v{8+r}, v{16+r}\nv_add_f32 v{24+r}, v{24+r}, v{34+r}")
        g(f"v_lshlrev_b32 v32, 1, v{vLANE}\nv_add_u32 v32, {L_QB}, v32")
        for r in range(3):
            g(f"v_add_f32 v{8+r}, v{8+r}, v{24+r}\nv_cvt_pk_bf16_f32 v{8+r}, v{8+r}, v{8+r}\nds_write_b16 v32, v{8+r} offset:{128*r}")
        g(f"s_waitcnt lgkmcnt(0)\n{qj}:")
        g("s_barrier")
        g(f"""v_and_b32 v32, 1, v{vLANE}
        v_lshlrev_b32 v32, 6, v32
        v_and_b32 v33, 48, v{vLANE}
        v_add_u32 v32, v32, v33
        v_add_u32 v32, {L_QB}, v32""")
        for j in range(3):
            g(f"ds_read_b128 {ar(aQ+4*j)}, v32 offset:{128*j}")
        g.init_softmax()
        g(f"""s_mul_i32 s{sT0}, s{sWV}, {NLDS*6144}
        v_add_u32 v{T+4}, s{sT0}, v{vL16}""")
        g.stamp(10)
        g(f"s_cmp_lg_u32 s{sPASS}, 0\ns_cbranch_scc1 L_p2start")

        NR1 = NUNIT - NLDS
        e1 = (-NR1) % NSLOT
        e1 = 0
        g(f"""s_add_u32 s{sKOFF}, s{sU0}, {NLDS*TSTRIDE}
        s_mov_b32 s{sVOFF}, s{sKOFF}""")
        for gi in range(A):
            g.issue_group((e1 + gi // 2) % NSLOT, gi % 2)
        g(f"s_waitcnt vmcnt({3*A})\ns_barrier")
        g.dma_wo()
        g(f"""s_mov_b32 s{sKREM}, {NR1 - (A+1)//2}
        s_mov_b32 s{sVREM}, {NR1 - A//2}
        s_mov_b32 s{sREM}, {NR1}""")
        g.lds_unit_read(0, 17)
        for t in range(NLDS):
            if t + 1 < NLDS:
                g.lds_unit_read(t + 1, 17 + (t + 1) % 2)
                g("s_waitcnt lgkmcnt(6)")
            else:
                g("s_waitcnt lgkmcnt(0)")
            g.qk(17 + t % 2)
            g("s_nop 1")
            g.pv(17 + t % 2)
        g.stamp(1)
        g(f"s_branch L_slot{e1}")

        g("L_p2start:")
        NR2 = NUNIT - NLDS - NSLOT
        if self.rev2:
            g(f"""s_add_u32 s{sKOFF}, s{sU0}, {(NLDS+NR2-1)*TSTRIDE}
            s_mov_b32 s{sT5}, {(-TSTRIDE) & 0xffffffff:#x}""")
        else:
            g(f"s_add_u32 s{sKOFF}, s{sU0}, {NLDS*TSTRIDE}")
        g(f"s_mov_b32 s{sVOFF}, s{sKOFF}\ns_waitcnt lgkmcnt(0)")
        pu = list(self.p2units)
        npre = len(pu)
        issued = 0
        for k in range(NSLOT):
            g.qk(k)
            g("s_nop 1")
            g.pv(k)
            if issued < npre and pu[issued] == k:
                g.issue_group(issued, 0)
                g.issue_group(issued, 1)
                issued += 1
            if k == 2:
                g.dma_wo()
            if k == NSLOT - 2:
                g.lds_unit_read(0, 16)
        for t in range(NLDS):
            if t + 1 < NLDS:
                g.lds_unit_read(t + 1, 16 + (t + 1) % 2)
                g("s_waitcnt lgkmcnt(6)")
            else:
                g("s_waitcnt lgkmcnt(0)")
            g.qk(16 + t % 2)
            g("s_nop 1")
            g.pv(16 + t % 2)
        gi = 2 * npre
        u = 0
        while gi < A:
            g.issue_group(gi // 2, gi % 2)
            gi += 1
        while gi - 2 * u > A:
            g(f"s_waitcnt vmcnt({3*(gi - 2*u - 1)})")
            g.qk(u)
            g(f"s_waitcnt vmcnt({3*(gi - 2*u - 2)})")
            if gi - 2 * u - 2 < A:
                g.issue_group(gi // 2, gi % 2)
                gi += 1
            g("s_nop 0")
            g.pv(u)
            u += 1
        assert gi - 2 * u == A
        g(f"""s_mov_b32 s{sKREM}, {NR2 - (gi+1)//2}
        s_mov_b32 s{sVREM}, {NR2 - gi//2}
        s_mov_b32 s{sREM}, {NR2 - u}""")
        g.stamp(1)
        g(f"s_branch L_slot{u}")

        g(".p2align 6")
        for k in range(NSLOT):
            g(f"L_slot{k}:")
            for kv in range(2):
                gidx = kv + A
                tslot = (k + gidx // 2) % NSLOT
                tkv = gidx % 2
                rem = sKREM if tkv == 0 else sVREM
                ni, cont = g.lab("L_noiss"), g.lab("L_cont")
                g(f"""s_waitcnt vmcnt({3*(A-1)})
                s_sub_u32 s{rem}, s{rem}, 1
                s_cbranch_scc1 {ni}""")
                g.issue_group(tslot, tkv)
                g(f"{cont}:")
                if kv == 0:
                    g.qk(k)
                else:
                    g.pv(k)
                self.tail = getattr(self, "tail", [])
                self.tail.append(f"{ni}:\ns_mov_b32 s{rem}, 0\ns_waitcnt vmcnt(0)\ns_branch {cont}")
            g(f"s_sub_u32 s{sREM}, s{sREM}, 1\ns_cmp_eq_u32 s{sREM}, 0\ns_cbranch_scc1 L_passend")
        g("s_branch L_slot0")
        for t in self.tail:
            g(t)
        g.rescale_sub()

        g("L_passend:")
        g.stamp(2)
        g(f"""v_add_f32_dpp v{vLS}, v{vLS}, v{vLS} row_ror:8 row_mask:0xf bank_mask:0xf
        s_nop 1
        v_add_f32_dpp v{vLS}, v{vLS}, v{vLS} row_bcast:15 row_mask:0xa bank_mask:0xf
        s_nop 1
        v_add_f32_dpp v{vLS}, v{vLS}, v{vLS} row_bcast:31 row_mask:0xc bank_mask:0xf
        v_sub_f32 v{vNEG}, 0, v{vNEG}
        s_lshl_b32 s{sT0}, s{sWV}, 3
        s_add_u32 s{sT0}, s{sT0}, {L_ML}
        v_mov_b32 v32, s{sT0}
        s_mov_b32 exec_lo, 0
        s_mov_b32 exec_hi, 0x80000000
        ds_write_b64 v32, v[{vNEG}:{vLS}]
        s_mov_b64 exec, -1""")
        g.part_write()
        g("s_waitcnt lgkmcnt(0)\ns_barrier")
        aj = g.lab("L_ajoin")
        g(f"s_cmp_lg_u32 s{sWV}, 0\ns_cbranch_scc1 {aj}")
        g(f"""v_mov_b32 v36, {L_ML}
        ds_read_b128 v[32:35], v36
        ds_read_b128 v[36:39], v36 offset:16""")
        g.part_read()
        g(f"""s_lshl_b32 s{sT0}, s{sH}, 13
        s_lshl_b32 s{sT1}, s{sS}, 7
        s_add_u32 s{sT0}, s{sT0}, s{sT1}
        s_add_u32 s{sT0}, s{sT0}, s{sBLK}
        s_waitcnt lgkmcnt(12)
        v_readfirstlane_b32 s{sF+4}, v33
        v_max3_f32 v33, v32, v34, v36
        v_max_f32 v33, v33, v38
        v_sub_f32 v32, v32, v33
        v_sub_f32 v34, v34, v33
        v_sub_f32 v36, v36, v33
        v_sub_f32 v38, v38, v33
        v_exp_f32 v32, v32
        v_exp_f32 v34, v34
        v_exp_f32 v36, v36
        v_exp_f32 v38, v38
        v_mul_f32 v35, v35, v34
        v_fmac_f32 v35, s{sF+4}, v32
        v_fmac_f32 v35, v37, v36
        v_fmac_f32 v35, v39, v38
        v_and_b32 v37, 1, v{vLANE}
        v_cmp_eq_u32 vcc, 1, v37
        v_lshrrev_b32 v37, 3, v{vLANE}
        v_and_b32 v39, 7, v{vLANE}
        v_cndmask_b32 v33, v33, v35, vcc
        v_lshlrev_b32 v37, 10, v37
        v_lshl_add_u32 v37, v39, 4, v37
        s_waitcnt lgkmcnt(0)""")
        for w in range(4):
            for j in range(3):
                g(f"v_add_f32 v{8+6*w+j}, v{8+6*w+j}, v{8+6*w+3+j}")
        for j in range(3):
            g(f"v_mul_f32 v{8+j}, v{8+j}, v32")
        for w in range(1, 4):
            for j in range(3):
                g(f"v_fmac_f32 v{8+j}, v{8+6*w+j}, v{32+2*w}")
        g(f"""v_mov_b32 v11, v33
        buffer_store_dwordx4 v[8:11], v37, {sreg(sWS)}, s{sT0} offen offset:{B_AP} sc1
        {aj}:""")
        g.stamp(3)

        def stage_wo(nl):
            g(f"v_add_u32 v39, s{sWB}, v{vL16}")
            for i in range(nl):
                g(f"ds_read_b128 {ar(aQ+4*i)}, v39 offset:{i*1024}")
            for i in range(nl):
                g(f"ds_read_b128 {vr(20+4*i)}, v39 offset:{(nl+i)*1024}")
            g(f"""v_and_b32 v36, 7, v{vLANE}
            v_lshlrev_b32 v36, 7, v36
            v_lshrrev_b32 v37, 3, v{vLANE}
            v_lshl_add_u32 v36, v37, 4, v36
            s_lshl_b32 s{sT0}, s{sH}, 3
            s_add_u32 s{sT0}, s{sT0}, s{sS}
            s_lshl_b32 s{sT0}, s{sT0}, 10
            s_add_u32 s{sT0}, s{sT0}, s{sBLK}""")
            g.poll([f"buffer_load_dwordx4 v[32:35], v36, {sreg(sWS)}, s{sT0} offen offset:{B_AP} sc1"], [32, 33, 34, 35], 37)
            g.stamp(4)
            dp = ("quad_perm:[1,0,3,2]", "quad_perm:[2,3,0,1]", "row_half_mirror")
            g(f"""v_mov_b32 v36, v35
            s_nop 1
            v_mov_b32_dpp v36, v35 row_ror:8 row_mask:0xf bank_mask:0xc
            v_mov_b32_dpp v35, v35 row_ror:8 row_mask:0xf bank_mask:0x3
            s_nop 0
            v_max_f32_dpp v37, v36, v36 {dp[0]} row_mask:0xf bank_mask:0xf
            s_nop 1
            v_max_f32_dpp v37, v37, v37 {dp[1]} row_mask:0xf bank_mask:0xf
            s_nop 1
            v_max_f32_dpp v37, v37, v37 {dp[2]} row_mask:0xf bank_mask:0xf
            v_sub_f32 v36, v36, v37
            v_exp_f32 v36, v36
            s_nop 0""")
            for r in range(4):
                g(f"v_mul_f32 v{32+r}, v{32+r}, v36")
            for d in dp:
                for r in range(4):
                    g(f"v_add_f32_dpp v{32+r}, v{32+r}, v{32+r} {d} row_mask:0xf bank_mask:0xf")
            g("v_rcp_f32 v35, v35\ns_nop 0")
            for j in range(3):
                g(f"v_mul_f32 v{32+j}, v{32+j}, v35\nv_cvt_pk_bf16_f32 v{36+j}, v{32+j}, v{32+j}")
            g.mkA(32, 36)
            g("s_waitcnt lgkmcnt(0)\ns_nop 0")
            for i in range(nl):
                g(f"v_mfma_f32_16x16x32_bf16 {vr(vACC+4*i)}, v[32:35], {ar(aQ+4*i)}, 0")
            for i in range(nl):
                g(f"ds_read_b128 {ar(aQ+4*i)}, v39 offset:{(2*nl+i)*1024}")
            g.mkA(32, 37)
            g("s_nop 1")
            for i in range(nl):
                g(f"v_mfma_f32_16x16x32_bf16 {vr(vACC+4*i)}, v[32:35], {vr(20+4*i)}, {vr(vACC+4*i)}")
            g.mkA(32, 38)
            g("s_waitcnt lgkmcnt(0)\ns_nop 0")
            for i in range(nl):
                g(f"v_mfma_f32_16x16x32_bf16 {vr(vACC+4*i)}, v[32:35], {ar(aQ+4*i)}, {vr(vACC+4*i)}")
            g.publish_y(nl, B_Y1, 256, 2)
        g.by_nl(stage_wo)
        g.stamp(5)
        g(f"s_cmp_ge_u32 s2, {NFFN}\ns_cbranch_scc1 L_notffn")

        g.ffn_index()
        g.dma_ffn()
        g("s_waitcnt vmcnt(0)")

        def stage_ffn(nl):
            g(f"v_add_u32 v39, s{sWB}, v{vL16}")
            for i in range(nl):
                g(f"ds_read_b128 {vr(20+4*i)}, v39 offset:{i*1024}")
            for i in range(nl):
                g(f"ds_read_b128 {ar(aQ+4*i)}, v39 offset:{(nl+i)*1024}")
            g.x_gather(B_X1, "ffn")
            g.stamp(6)
            g.ln()
            g("s_waitcnt lgkmcnt(0)")
            for i in range(nl):
                g(f"v_and_b32 v32, 0xffff, v{36+i}\nv_and_b32 v33, 0xffff0000, v{36+i}")
                for e in range(8):
                    c = f"v{8+e}" if i else "0"
                    g(f"v_dot2_f32_bf16 v{8+e}, v{20+4*i+e//2}, v{32+(e&1)}, {c}")
                g("s_nop 2")
            for e in range(4):
                g(f"v_permlane32_swap_b32 v{8+e}, v{12+e}")
            for e in range(4):
                g(f"v_add_f32 v{8+e}, v{8+e}, v{12+e}")
            g(f"""v_lshrrev_b32 v32, 3, v{vLANE}
            v_lshlrev_b32 v32, 4, v32
            v_permlane16_swap_b32 v8, v10
            v_permlane16_swap_b32 v9, v11
            v_add_u32 v32, {L_HP}, v32
            v_add_f32 v8, v8, v10
            v_add_f32 v9, v9, v11
            s_lshl_b32 s{sT0}, s{sWV}, 2
            v_add_u32 v33, s{sT0}, v32
            v_add_f32_dpp v10, v8, v8 row_ror:8 row_mask:0xf bank_mask:0x3
            s_nop 1
            v_add_f32_dpp v10, v9, v9 row_ror:8 row_mask:0xf bank_mask:0xc
            s_nop 1
            v_add_f32_dpp v10, v10, v10 quad_perm:[1,0,3,2] row_mask:0xf bank_mask:0xf
            s_nop 1
            v_add_f32_dpp v10, v10, v10 quad_perm:[2,3,0,1] row_mask:0xf bank_mask:0xf
            s_nop 1
            v_add_f32_dpp v10, v10, v10 row_half_mirror row_mask:0xf bank_mask:0xf
            ds_write_b32 v33, v10
            s_waitcnt lgkmcnt(0)
            s_barrier
            ds_read_b128 v[8:11], v32
            s_waitcnt lgkmcnt(0)
            v_add_f32 v8, v8, v9
            v_add_f32 v10, v10, v11
            v_add_f32 v8, v8, v10""")
            g.bf16r(8, 8)
            g(f"""v_mul_f32 v9, {NLOG2E:#x}, v8
            v_exp_f32 v9, v9
            s_nop 0
            v_add_f32 v9, 1.0, v9
            v_rcp_f32 v9, v9
            s_nop 0
            v_mul_f32 v8, v8, v9
            v_cvt_pk_bf16_f32 v36, v8, v8""")
            g.mkA(32, 36)
            g("s_nop 1")
            for i in range(nl):
                g(f"v_mfma_f32_16x16x32_bf16 {vr(vACC+4*i)}, v[32:35], {ar(aQ+4*i)}, 0")
            g.publish_y(nl, B_Y2, NFFN, sT3)
        g.by_nl(stage_ffn)
        g.stamp(7)
        g("s_branch L_toq")

        g("L_notffn:")
        g(f"s_cmp_ge_u32 s2, {RED0+NRED}\ns_cbranch_scc1 L_toq")
        g.reducer(B_Y1, 256, False, B_X1)
        g.stamp(6)
        nq = g.lab("L_nowq")
        g(f"s_cmp_lg_u32 s{sPASS}, 0\ns_cbranch_scc1 {nq}")
        g.dma_wq()
        g(f"{nq}:")
        g("s_barrier")
        g.reducer(B_Y2, NFFN, True, B_X2)
        g.stamp(7)
        g(f"s_cmp_lg_u32 s{sPASS}, 0\ns_cbranch_scc1 L_fin\ns_branch L_getx2")

        g("L_toq:")
        g(f"s_cmp_lg_u32 s{sPASS}, 0\ns_cbranch_scc1 L_fin")
        g.dma_wq()
        g("L_getx2:")
        g.x_gather(B_X2, "q")
        g.stamp(8)
        g.dump_stamps()
        g(f"""s_add_u32 s{sQP}, s{sBLK}, {B_QP}
        s_mov_b32 s{sBLK}, {W_B1}
        s_mov_b32 s{sPASS}, 1
        s_branch L_stageq""")
        g("L_fin:")
        g("s_waitcnt vmcnt(0)")
        g.stamp(8)
        g.dump_stamps()
        g("L_end:\ns_endpgm")

        out = HEADER + f"; @launch grid=(256,1,1) block=(256,1,1) lds={LDS_BYTES}\n"
        out += f'.amdgcn_target "amdgcn-amd-amdhsa--gfx950"\n.text\n.globl {KN}\n.p2align 8\n.type {KN},@function\n{KN}:\n'
        out += "\n".join(self.L) + "\n"
        out += f""".section .rodata,"a"
.p2align 6
.amdhsa_kernel {KN}
  .amdhsa_next_free_vgpr 512
  .amdhsa_next_free_sgpr 102
  .amdhsa_accum_offset 256
  .amdhsa_group_segment_fixed_size 0
  .amdhsa_kernarg_size 88
  .amdhsa_user_sgpr_count 2
  .amdhsa_user_sgpr_kernarg_segment_ptr 1
  .amdhsa_system_sgpr_workgroup_id_x 1
.end_amdhsa_kernel
"""
        return out


def parse(spec):
    kw = {}
    if spec:
        for kv in spec.split(","):
            k, v = kv.split("=")
            try:
                v = ast.literal_eval(v.replace(":", ","))
            except Exception:
                pass
            if k.endswith("pol"):
                v = "" if v == "def" else v.replace("+", " ")
            kw[k] = v
    return kw


if __name__ == "__main__":
    open(sys.argv[1], "w").write(Gen(**parse(sys.argv[2] if len(sys.argv) > 2 else "")).build())
```

```python
import sys, ast, copy

KN = "interleave_layers__mha_block_cached__dense_activation_silu__decode_kernel"

HEADER = """; Kernarg layout for this problem (88 bytes, ptrs only, base s[0:1]):
"""

KVB = 402653184
UB = 3072
STR = 16 * UB
NF = 45
LDS0, NLDS = 20, 10
NK = 128 - NF
L_W = 4 * NLDS * UB
L_S = L_W + 30720
L_PART = L_S
L_ML = L_PART + 6144
L_QB = L_ML + 128
L_RED = L_QB + 1152
L_HP = L_RED + 256
L_XK = L_HP + 128
L_END = L_XK + 64
LDS_BYTES = 163840
assert L_END <= LDS_BYTES
WOFF = [0, 9216, 18432, 24576]
K1 = 1024
W_QP0 = 0
W_B0 = 256 * K1
B_AP = 0
B_Y1 = 768 * K1
B_Y2 = B_Y1 + 640 * K1
B_X1 = B_Y2 + 480 * K1
B_DN = B_X1 + 4 * K1
B_X2 = B_DN + 20 * K1
B_QP = B_X2 + 4 * K1
B_SIZE = B_QP + 256 * K1
W_B1 = W_B0 + B_SIZE
NCLR = 4
assert W_B1 + B_X2 <= W_B0 + NCLR * 1024 * K1
W_STAMP = 6144 * K1
WS_REC = 8192 * K1
NRED = 40
RED0 = 192
NFFN = 192
SCALE = 0x3d93cd3a
LOG2E = 0x3fb8aa3b
NLOG2E = 0xbfb8aa3b
INV640 = 0x3acccccd
EPS = 0x3727c5ac
SPIN = 400000

sK, sV, sWS, sWQ, sWO, sW1, sW2, sX, sOUT, sDBG = 4, 8, 12, 16, 20, 24, 28, 32, 36, 40
sHQ, sS, sWV = 44, 45, 46
sBA, sBB = 47, 48
sNB = 49
sOFF = 50
sLOOP = 51
sM = 52
sPASS = 53
sRET = 54
sBLK = 56
sSEGH = 57
sWB = 58
sCNT = 59
sT0, sT1, sT2, sT3, sT4, sSEGP = 60, 61, 62, 63, 64, 65
sRT2 = 66
sMK = 68
sST = 76

vLANE, vKO, vVO, vL16 = 0, 1, 2, 3
vMK = 4
vACC = 8
vD = 20
vP = 24
vNEG, vLS = 28, 29
vT = 30
vLA, vSC, vSV, vMX = 32, 33, 34, 35
aQ = 240


def sreg(n, k=4):
    return f"s[{n}:{n+k-1}]"


def vr(n, k=4):
    return f"v[{n}:{n+k-1}]" if k > 1 else f"v{n}"


def ar(n, k=4):
    return f"a[{n}:{n+k-1}]" if k > 1 else f"a{n}"


def buf(b):
    if b < 18:
        return [vr(40 + 12 * b + 4 * i) for i in range(3)]
    return [ar(12 * (b - 18) + 4 * i) for i in range(3)]


def kbuf(k):
    if k < LDS0:
        return 3 + k
    if k < LDS0 + NLDS:
        return None
    return 3 + k - NLDS


STAGE = [ar(252), vr(36), vr(vP)]


class Gen:
    def __init__(self, pol="nt", polx="nt", wpol="nt", stamps=False, burst=(2,), gate=1, xa="100", xb="100", order2=None):
        self.L = []
        self.pol = (" " + pol) if pol else ""
        self.polx = (" " + polx) if polx else ""
        self.wpol = (" " + wpol) if wpol else ""
        self.stamps = stamps
        self.uid = 0
        self.q = []
        self.burst = (burst,) if isinstance(burst, int) else tuple(burst)
        self.gate = gate
        self.xa = str(xa).zfill(3)
        self.xb = str(xb).zfill(3)
        self.order2 = order2

    def __call__(self, s):
        for line in s.strip("\n").split("\n"):
            line = line.strip()
            if line:
                self.L.append(line if line.endswith(":") else "    " + line)

    def lab(self, p="L"):
        self.uid += 1
        return f"{p}_{self.uid}"

    def op(self, tag, n=1):
        self.q += [tag] * n

    def wait(self, tag):
        if tag not in self.q:
            return
        last = len(self.q) - 1 - self.q[::-1].index(tag)
        self.q = self.q[last + 1:]
        assert len(self.q) < 64
        self(f"s_waitcnt vmcnt({len(self.q)})")

    def stamp(self, idx):
        if self.stamps:
            assert idx < 12
            self(f"s_memrealtime s[{sST+2*idx}:{sST+2*idx+1}]")

    def dump_stamps(self):
        if not self.stamps:
            return
        self("s_waitcnt lgkmcnt(0)")
        self(f"v_mov_b32 v{vT}, 0")
        for i in range(12):
            self(f"v_writelane_b32 v{vT}, s{sST+2*i}, {i}")
        self(f"""s_getreg_b32 s{sT0}, hwreg(HW_REG_XCC_ID)
        v_writelane_b32 v{vT}, s{sT0}, 15
        s_lshl_b32 s{sT0}, s2, 2
        s_add_u32 s{sT0}, s{sT0}, s{sWV}
        s_lshl_b32 s{sT0}, s{sT0}, 1
        s_add_u32 s{sT0}, s{sT0}, s{sPASS}
        s_lshl_b32 s{sT0}, s{sT0}, 6
        s_add_u32 s{sT0}, s{sT0}, {W_STAMP}
        v_lshlrev_b32 v{vT+1}, 2, v{vLANE}
        s_mov_b64 exec, 0xffff
        buffer_store_dword v{vT}, v{vT+1}, {sreg(sWS)}, s{sT0} offen
        s_mov_b64 exec, -1""")

    def maxall(self, regs, tmp):
        r = list(regs)
        if len(r) % 2 == 0:
            self(f"v_max_u32 v{tmp}, v{r[0]}, v{r[1]}")
            r = r[2:]
        else:
            self(f"v_max3_u32 v{tmp}, v{r[0]}, v{r[1]}, v{r[2]}")
            r = r[3:]
        while r:
            self(f"v_max3_u32 v{tmp}, v{tmp}, v{r[0]}, v{r[1]}")
            r = r[2:]

    def poll(self, loads, regs, tmp, pre=False):
        top, chk, done = self.lab("L_poll"), self.lab("L_chk"), self.lab("L_got")
        self(f"s_mov_b32 s{sCNT}, {SPIN}")
        if pre:
            self(f"s_branch {chk}")
        self(f"{top}:")
        for ld in loads:
            self(ld)
        self(f"s_waitcnt vmcnt(0)\n{chk}:")
        self.maxall(regs, tmp)
        self(f"""v_cmp_eq_u32 vcc, -1, v{tmp}
        s_cbranch_vccz {done}
        s_sub_u32 s{sCNT}, s{sCNT}, 1
        s_cbranch_scc0 {top}
        {done}:""")

    def poll_masked(self, loads, tmp):
        top, done = self.lab("L_poll"), self.lab("L_got")
        self(f"s_mov_b32 s{sCNT}, {SPIN}\n{top}:")
        for k, (ld, _) in enumerate(loads):
            self(f"s_mov_b64 exec, {sreg(sMK+2*k, 2)}\n{ld}")
        self("s_mov_b64 exec, -1\ns_waitcnt vmcnt(0)")
        for k, (_, regs) in enumerate(loads):
            self.maxall(regs, tmp + (k & 1))
            self(f"v_cmp_eq_u32 {sreg(sMK+2*k, 2)}, -1, v{tmp + (k & 1)}")
        self(f"s_or_b64 vcc, {sreg(sMK, 2)}, {sreg(sMK+2, 2)}")
        for k in range(2, len(loads)):
            self(f"s_or_b64 vcc, vcc, {sreg(sMK+2*k, 2)}")
        self(f"""s_cbranch_scc0 {done}
        s_sub_u32 s{sCNT}, s{sCNT}, 1
        s_cbranch_scc0 {top}
        {done}:""")

    def bf16r(self, d, s):
        self(f"v_cvt_pk_bf16_f32 v{d}, v{s}, v{s}\nv_and_b32 v{d}, 0xffff0000, v{d}")

    def mkA(self, dst, src):
        for r in range(4):
            self(f"v_and_b32 v{dst+r}, v{vMK+r}, v{src}")

    def issue(self, b, kv, so, pol, tag=None):
        srd, vo = (sK, vKO) if kv == 0 else (sV, vVO)
        for j, r in enumerate(buf(b)):
            self(f"buffer_load_dwordx4 {r}, v{vo}, {sreg(srd)}, s{so} offen offset:{128*j}{pol}")
        if tag is not None:
            self.op(tag, 3)

    def score(self, regs):
        T = vT
        self(f"""v_mfma_f32_16x16x32_bf16 {vr(vD)}, {regs[0]}, {ar(aQ)}, 0
        v_mfma_f32_16x16x32_bf16 {vr(vD)}, {regs[1]}, {ar(aQ+4)}, {vr(vD)}
        v_mfma_f32_16x16x32_bf16 {vr(vD)}, {regs[2]}, {ar(aQ+8)}, {vr(vD)}
        s_nop 7
        v_add_f32_dpp v{T}, v{vD+1}, v{vD} quad_perm:[1,0,3,2] row_mask:0xf bank_mask:0x3
        s_nop 1
        v_add_f32_dpp v{T}, v{vD+3}, v{vD+2} quad_perm:[1,0,3,2] row_mask:0xf bank_mask:0xc
        s_nop 1
        v_mov_b32_dpp v{T+1}, v{T} quad_perm:[0,0,2,2] row_mask:0xf bank_mask:0xf""")
        self.bf16r(T + 1, T + 1)
        self(f"v_mul_f32 v{T+1}, {SCALE:#x}, v{T+1}\nv_cvt_pk_bf16_f32 v{T+1}, v{T+1}, v{T+1}")

    def qk_store(self, regs, off):
        self.score(regs)
        self(f"""ds_write_b16 v{vSC}, v{vT+1} offset:{off}
        v_and_b32 v{vT}, 0xffff0000, v{vT+1}
        v_max_f32 v{vMX}, v{vMX}, v{vT}""")

    def prob(self, src):
        T = vT
        self(f"""v_fmamk_f32 v{T+1}, v{src}, {LOG2E:#x}, v{vNEG}
        v_exp_f32 v{T+1}, v{T+1}
        s_nop 0
        v_add_f32 v{vLS}, v{vLS}, v{T+1}
        v_cvt_pk_bf16_f32 v{T+1}, v{T+1}, v{T+1}""")
        self.mkA(vP, T + 1)

    def qk_online(self, k):
        if kbuf(k) is None:
            for i in range(3):
                self(f"ds_read_b128 {STAGE[i]}, v{vLA} offset:{(k-LDS0)*UB + i*1024}")
            self("s_waitcnt lgkmcnt(0)")
            self.score(STAGE)
        else:
            self.score(buf(kbuf(k)))
        sk = self.lab("L_nors")
        self(f"""v_and_b32 v{vT+1}, 0xffff0000, v{vT+1}
        v_cmp_lt_f32 vcc, s{sM}, v{vT+1}
        s_cbranch_vccz {sk}
        s_call_b64 s[{sRET}:{sRET+1}], L_rescale
        {sk}:""")
        self.prob(vT + 1)

    def p_stored(self, off):
        self(f"ds_read_u16_d16_hi v{vSV}, v{vSC} offset:{off}\ns_waitcnt lgkmcnt(0)")
        self.prob(vSV)

    def pv(self, b):
        for j, r in enumerate(buf(b)):
            self(f"v_mfma_f32_16x16x32_bf16 {vr(vACC+4*j)}, {vr(vP)}, {r}, {vr(vACC+4*j)}")

    def wavemax(self, d, s):
        self(f"""s_nop 1
        v_max_f32_dpp v{d}, v{s}, v{s} row_ror:8 row_mask:0xf bank_mask:0xf
        s_nop 1
        v_max_f32_dpp v{d}, v{d}, v{d} row_bcast:15 row_mask:0xa bank_mask:0xf
        s_nop 1
        v_max_f32_dpp v{d}, v{d}, v{d} row_bcast:31 row_mask:0xc bank_mask:0xf
        s_nop 1
        v_readlane_b32 s{sM}, v{d}, 63
        s_nop 1
        v_mov_b32 v{d}, s{sM}
        v_mul_f32 v{d}, {NLOG2E:#x}, v{d}""")

    def rescale_sub(self):
        self("L_rescale:")
        self.wavemax(vD, vT + 1)
        self(f"""v_sub_f32 v{vD+1}, v{vD}, v{vNEG}
        v_exp_f32 v{vD+1}, v{vD+1}
        v_mov_b32 v{vNEG}, v{vD}
        v_mul_f32 v{vLS}, v{vLS}, v{vD+1}""")
        for r in range(12):
            self(f"v_mul_f32 v{vACC+r}, v{vACC+r}, v{vD+1}")
        self(f"s_setpc_b64 s[{sRET}:{sRET+1}]")

    def init_softmax(self):
        for r in range(12):
            self(f"v_mov_b32 v{vACC+r}, 0")
        self(f"""v_mov_b32 v{vLS}, 0
        v_mov_b32 v{vNEG}, 0x7f800000
        s_mov_b32 s{sM}, 0xff800000""")

    def load_q(self, seg):
        self(f"""v_and_b32 v{vT}, 1, v{vLANE}
        v_lshlrev_b32 v{vT}, 6, v{vT}
        v_and_b32 v{vT+1}, 48, v{vLANE}
        v_add_u32 v{vT}, v{vT}, v{vT+1}
        v_add_u32 v{vT}, {L_QB + 384*seg}, v{vT}""")
        for j in range(3):
            self(f"ds_read_b128 {ar(aQ+4*j)}, v{vT} offset:{128*j}")

    def flush(self):
        T = vT
        self(f"""v_add_f32_dpp v{vLS}, v{vLS}, v{vLS} row_ror:8 row_mask:0xf bank_mask:0xf
        v_sub_f32 v{vNEG}, 0, v{vNEG}
        s_lshl_b32 s{sT0}, s{sT4}, 2
        v_add_f32_dpp v{vLS}, v{vLS}, v{vLS} row_bcast:15 row_mask:0xa bank_mask:0xf
        s_add_u32 s{sT0}, s{sT0}, s{sWV}
        s_lshl_b32 s{sT0}, s{sT0}, 3
        v_add_f32_dpp v{vLS}, v{vLS}, v{vLS} row_bcast:31 row_mask:0xc bank_mask:0xf
        s_add_u32 s{sT0}, s{sT0}, {L_ML}
        v_mov_b32 v{T}, s{sT0}
        s_mov_b32 exec_lo, 0
        s_mov_b32 exec_hi, 0x80000000
        ds_write_b64 v{T}, v[{vNEG}:{vLS}]
        s_mov_b64 exec, -1
        s_lshl_b32 s{sT0}, s{sWV}, 1
        s_add_u32 s{sT0}, s{sT0}, s{sT4}
        s_mul_i32 s{sT0}, s{sT0}, 768
        s_add_u32 s{sT0}, s{sT0}, {L_PART}
        v_lshrrev_b32 v{T+1}, 5, v{vLANE}
        v_lshl_add_u32 v{T+1}, v{T+1}, 8, s{sT0}
        v_and_b32 v{vP}, 7, v{vLANE}
        v_lshl_add_u32 v{T+1}, v{vP}, 5, v{T+1}
        v_and_b32 v{vP}, 16, v{vLANE}
        v_add_u32 v{T+1}, v{T+1}, v{vP}""")
        self.parity(3)
        self(f"""s_mov_b32 exec_lo, 0x00ff00ff
        s_mov_b32 exec_hi, 0x00ff00ff
        ds_write_b128 v{T+1}, {vr(vACC)}
        s_mov_b32 exec_hi, 0
        ds_write_b128 v{T+1}, {vr(vACC+8)} offset:512
        s_mov_b64 exec, -1""")

    def parity(self, nl):
        for r in range(4):
            self(f"v_permlane32_swap_b32 v{vACC+r}, v{vACC+4+r}")
        if nl == 3:
            for r in range(4):
                self(f"v_permlane32_swap_b32 v{vACC+8+r}, v{vD+r}")
        else:
            self("s_nop 0")
        for r in range(4):
            self(f"v_add_f32_dpp v{vACC+r}, v{vACC+4+r}, v{vACC+r} row_ror:8 row_mask:0xf bank_mask:0xf")
        if nl == 3:
            for r in range(4):
                self(f"v_add_f32_dpp v{vACC+8+r}, v{vD+r}, v{vACC+8+r} row_ror:8 row_mask:0xf bank_mask:0xf")

    def arrive(self, step):
        if not self.gate:
            return
        sk = self.lab("L_noarr")
        self(f"s_cmp_lg_u32 s{sWV}, 3\ns_cbranch_scc1 {sk}")
        if step == 0:
            self(f"""s_lshl_b32 s{sT0}, s{sS}, 8
            s_add_u32 s{sT0}, s{sT0}, s{sBLK}
            s_add_u32 s{sT0}, s{sT0}, {B_DN}
            v_mov_b32 v36, 1
            v_mov_b32 v37, 0
            s_mov_b64 exec, 1
            buffer_atomic_add v36, v37, {sreg(sWS)}, s{sT0} offen sc0 sc1
            s_mov_b64 exec, -1""")
        else:
            self(f"""v_readfirstlane_b32 s{sT0}, v36
            v_lshlrev_b32 v37, 8, v{vLANE}
            v_mov_b32 v36, 1
            s_cmp_lg_u32 s{sT0}, 30
            s_cbranch_scc1 {sk}
            s_add_u32 s{sT0}, s{sBLK}, {B_DN + 2048}
            buffer_atomic_add v36, v37, {sreg(sWS)}, s{sT0} offen sc1""")
        self(f"{sk}:")

    def gatewait(self):
        if not self.gate:
            return
        top, done, sk = self.lab("L_gate"), self.lab("L_gated"), self.lab("L_gskip")
        self(f"""s_cmp_lg_u32 s{sWV}, 0
        s_cbranch_scc1 {sk}
        s_and_b32 s{sT0}, s2, 63
        s_lshl_b32 s{sT0}, s{sT0}, 8
        s_add_u32 s{sT0}, s{sT0}, s{sBLK}
        s_add_u32 s{sT0}, s{sT0}, {B_DN + 2048}
        v_mov_b32 v37, 0
        s_mov_b32 s{sCNT}, {SPIN}
        s_mov_b64 exec, 1
        {top}:
        buffer_load_dword v36, v37, {sreg(sWS)}, s{sT0} offen sc1
        s_waitcnt vmcnt(0)
        v_cmp_eq_u32 vcc, 7, v36
        s_cbranch_vccnz {done}
        s_sleep 2
        s_sub_u32 s{sCNT}, s{sCNT}, 1
        s_cbranch_scc0 {top}
        {done}:
        s_mov_b64 exec, -1
        {sk}:
        s_barrier""")

    def dma_tiles(self, srd, vaddr, tiles):
        for lo, imm in tiles:
            self(f"""s_add_u32 m0, s{sWB}, {lo}
            s_add_u32 s{sT2}, s{sT1}, {imm}
            buffer_load_dwordx4 v{vaddr}, {sreg(srd)}, s{sT2} offen{self.wpol} lds""")

    def by_nl(self, fn):
        l2, le = self.lab("L_nl2"), self.lab("L_nle")
        self(f"s_cmp_ge_u32 s{sWV}, 2\ns_cbranch_scc1 {l2}")
        fn(3)
        self(f"s_branch {le}\n{l2}:")
        fn(2)
        self(f"{le}:")

    def dma_wq(self):
        T = vT
        self(f"""v_lshrrev_b32 v{T}, 3, v{vLANE}
        v_mul_u32_u24 v{T}, 12288, v{T}
        v_and_b32 v{T+1}, 7, v{vLANE}
        v_lshl_add_u32 v{T}, v{T+1}, 4, v{T}
        s_mul_i32 s{sT1}, s{sS}, 10
        s_add_u32 s{sT1}, s{sT1}, s{sWV}
        s_mul_i32 s{sT1}, s{sT1}, {8*12288}
        s_mul_i32 s{sT2}, s{sHQ}, 384
        s_add_u32 s{sT1}, s{sT1}, s{sT2}""")
        self.by_nl(lambda nl: self.dma_tiles(sWQ, T, [((i*3+j)*1024, i*32*12288 + j*128) for i in range(nl) for j in range(3)]))
        self.op("w", 6)

    def dma_wo(self):
        T = vT
        self(f"""v_lshrrev_b32 v{T}, 3, v{vLANE}
        v_mul_u32_u24 v{T}, 1280, v{T}
        v_and_b32 v{T+1}, 7, v{vLANE}
        v_lshl_add_u32 v{T}, v{T+1}, 4, v{T}
        s_mul_i32 s{sT1}, s{sHQ}, 24
        s_add_u32 s{sT1}, s{sT1}, s{sS}
        s_mul_i32 s{sT1}, s{sT1}, {8*1280}
        s_lshl_b32 s{sT2}, s{sWV}, 7
        s_add_u32 s{sT1}, s{sT1}, s{sT2}""")
        self.by_nl(lambda nl: self.dma_tiles(sWO, T, [((j*nl+i)*1024, j*64*1280 + i*512) for j in range(3) for i in range(nl)]))
        self.op("w", 6)

    def dma_ffn(self):
        T = vT
        self(f"""v_mul_u32_u24 v{T}, 3072, v{vLANE}
        s_mul_i32 s{sT1}, s{sWV}, {64*3072}
        s_lshl_b32 s{sT2}, s{sT3}, 4
        s_add_u32 s{sT1}, s{sT1}, s{sT2}""")
        self.by_nl(lambda nl: self.dma_tiles(sW1, T, [(i*1024, i*256*3072) for i in range(nl)]))
        self(f"""v_lshrrev_b32 v{T}, 3, v{vLANE}
        v_mul_u32_u24 v{T}, 1280, v{T}
        v_and_b32 v{T+1}, 7, v{vLANE}
        v_lshl_add_u32 v{T}, v{T+1}, 4, v{T}
        s_mul_i32 s{sT1}, s{sT3}, {8*1280}
        s_lshl_b32 s{sT2}, s{sWV}, 7
        s_add_u32 s{sT1}, s{sT1}, s{sT2}""")
        self.by_nl(lambda nl: self.dma_tiles(sW2, T, [((nl+i)*1024, i*512) for i in range(nl)]))

    def ffn_index(self):
        self(f"""s_and_b32 s{sT3}, s2, 7
        s_mul_i32 s{sT3}, s{sT3}, 24
        s_lshr_b32 s{sT2}, s2, 3
        s_add_u32 s{sT3}, s{sT3}, s{sT2}""")

    def ln(self):
        S1, S2, T = 18, 19, 32
        self(f"v_readfirstlane_b32 s{sT0}, v8\ns_nop 1")
        self(f"v_subrev_f32 v{S1}, s{sT0}, v8\nv_mul_f32 v{S2}, v{S1}, v{S1}")
        for i in range(1, 10):
            self(f"v_subrev_f32 v{T+(i&1)}, s{sT0}, v{8+i}\nv_add_f32 v{S1}, v{S1}, v{T+(i&1)}\nv_fmac_f32 v{S2}, v{T+(i&1)}, v{T+(i&1)}")
        self("s_nop 0")
        for d in ("quad_perm:[1,0,3,2] row_mask:0xf", "quad_perm:[2,3,0,1] row_mask:0xf", "row_half_mirror row_mask:0xf",
                  "row_mirror row_mask:0xf", "row_bcast:15 row_mask:0xa", "row_bcast:31 row_mask:0xc"):
            self(f"""s_nop 0
            v_add_f32_dpp v{S1}, v{S1}, v{S1} {d} bank_mask:0xf
            v_add_f32_dpp v{S2}, v{S2}, v{S2} {d} bank_mask:0xf""")
        self(f"""s_nop 0
        v_readlane_b32 s{sT1}, v{S1}, 63
        v_readlane_b32 s{sT2}, v{S2}, 63
        v_mov_b32 v{T}, {INV640:#x}
        s_nop 0
        v_mul_f32 v{S1}, s{sT1}, v{T}
        v_mul_f32 v{S2}, s{sT2}, v{T}
        v_fma_f32 v{S2}, -v{S1}, v{S1}, v{S2}
        v_max_f32 v{S2}, 0, v{S2}
        v_add_f32 v{S1}, s{sT0}, v{S1}""")
        self.bf16r(S1, S1)
        self.bf16r(S2, S2)
        self(f"v_add_f32 v{S2}, {EPS:#x}, v{S2}")
        self.bf16r(S2, S2)
        self(f"v_sqrt_f32 v{S2}, v{S2}\ns_nop 0")
        self.bf16r(S2, S2)
        self(f"v_rcp_f32 v{S2}, v{S2}")
        for i in range(3):
            self(f"v_sub_f32 v{36+i}, v{36+i}, v{S1}")
            self.bf16r(36 + i, 36 + i)
        for i in range(3):
            self(f"v_mul_f32 v{36+i}, v{36+i}, v{S2}\nv_cvt_pk_bf16_f32 v{36+i}, v{36+i}, v{36+i}")

    def x_gather(self, xoff, mode):
        T = 32
        if mode == "ffn":
            self(f"""s_lshl_b32 s{sT0}, s{sWV}, 8
            v_lshl_add_u32 v{T}, v{vLANE}, 2, s{sT0}
            s_cmp_lt_u32 s{sWV}, 2
            s_cselect_b32 s{sT0}, 2, 1
            s_lshl_b32 s{sT0}, s{sT0}, 10""")
            o1 = 1024
        else:
            self(f"""s_mul_i32 s{sT0}, s{sS}, 10
            s_add_u32 s{sT0}, s{sT0}, s{sWV}
            s_lshl_b32 s{sT0}, s{sT0}, 5
            v_lshrrev_b32 v{T}, 3, v{vLANE}
            v_lshl_add_u32 v{T}, v{T}, 2, s{sT0}
            s_cmp_lt_u32 s{sWV}, 2
            s_cselect_b32 s{sT0}, 2, 1
            s_lshl_b32 s{sT0}, s{sT0}, 7""")
            o1 = 128
        self(f"""v_add_u32 v{T+1}, s{sT0}, v{T}
        v_lshlrev_b32 v{T+2}, 3, v{vLANE}
        s_add_u32 s{sT1}, s{sBLK}, {xoff}""")
        ws = sreg(sWS)
        self.poll([f"buffer_load_dwordx4 v[8:11], v{vL16}, {ws}, s{sT1} offen sc1",
                   f"buffer_load_dwordx4 v[12:15], v{vL16}, {ws}, s{sT1} offen offset:1024 sc1",
                   f"buffer_load_dwordx2 v[16:17], v{T+2}, {ws}, s{sT1} offen offset:2048 sc1",
                   f"buffer_load_dword v36, v{T}, {ws}, s{sT1} offen sc1",
                   f"buffer_load_dword v37, v{T}, {ws}, s{sT1} offen offset:{o1} sc1",
                   f"buffer_load_dword v38, v{T+1}, {ws}, s{sT1} offen sc1"],
                  list(range(8, 18)) + [36, 37, 38], 39)

    def part_write(self):
        T = vT
        self(f"""v_lshrrev_b32 v{T}, 5, v{vLANE}
        v_mul_u32_u24 v{T}, 768, v{T}
        v_and_b32 v{T+1}, 7, v{vLANE}
        v_lshl_add_u32 v{T}, v{T+1}, 5, v{T}
        v_and_b32 v{T+1}, 16, v{vLANE}
        v_add_u32 v{T}, v{T}, v{T+1}
        s_mul_i32 s{sT0}, s{sWV}, 1536
        s_add_u32 s{sT0}, s{sT0}, {L_PART}
        v_add_u32 v{T}, s{sT0}, v{T}
        s_mov_b32 exec_lo, 0x00ff00ff
        s_mov_b32 exec_hi, 0xff00ff00
        ds_write_b128 v{T}, {vr(vACC)}
        ds_write_b128 v{T}, {vr(vACC+4)} offset:256
        ds_write_b128 v{T}, {vr(vACC+8)} offset:512
        s_mov_b64 exec, -1""")

    def publish_y(self, nl, yoff, P, sprod):
        T = 32
        P64 = P * 64
        self(f"""v_bfe_u32 v{T}, v{vLANE}, 1, 2
        v_lshrrev_b32 v{T+1}, 5, v{vLANE}
        v_lshl_add_u32 v{T}, v{T+1}, 4, v{T}
        v_mul_u32_u24 v{T}, {P64}, v{T}
        v_and_b32 v{T+1}, 1, v{vLANE}
        v_lshl_add_u32 v{T}, v{T+1}, 5, v{T}
        v_and_b32 v{T+1}, 16, v{vLANE}
        v_add_u32 v{T}, v{T}, v{T+1}
        s_mul_i32 s{sT0}, s{sWV}, {4*P64}
        s_lshl_b32 s{sT1}, s{sprod}, 6
        s_add_u32 s{sT0}, s{sT0}, s{sT1}
        s_add_u32 s{sT0}, s{sT0}, s{sBLK}
        s_add_u32 s{sT0}, s{sT0}, {yoff}
        s_add_u32 s{sT1}, s{sT0}, {32*P64}""")
        self.parity(nl)
        self(f"""s_mov_b32 exec_lo, 0x00ff00ff
        s_mov_b32 exec_hi, 0x00ff00ff
        buffer_store_dwordx4 {vr(vACC)}, v{T}, {sreg(sWS)}, s{sT0} offen sc1""")
        if nl == 3:
            self(f"""s_mov_b32 exec_hi, 0
            buffer_store_dwordx4 {vr(vACC+8)}, v{T}, {sreg(sWS)}, s{sT1} offen sc1""")
        self("s_mov_b64 exec, -1")

    def reducer(self, yoff, P, final_possible, xoff):
        nld = P // 64
        T = 32
        self(f"""s_sub_u32 s{sT3}, s2, {RED0}
        s_mul_i32 s{sT1}, s{sT3}, {P*64}
        s_lshl_b32 s{sT0}, s{sWV}, 10
        s_add_u32 s{sT1}, s{sT1}, s{sT0}
        s_add_u32 s{sT1}, s{sT1}, s{sBLK}
        s_add_u32 s{sT1}, s{sT1}, {yoff}""")
        for k in range(1, nld):
            self(f"v_add_u32 v{T+k}, {4096*k}, v{vL16}")
        for k in range(nld):
            self(f"s_mov_b64 {sreg(sMK+2*k, 2)}, -1")
        self.poll_masked([(f"buffer_load_dwordx4 {vr(8+4*k)}, v{vL16 if k == 0 else T+k}, {sreg(sWS)}, s{sT1} offen sc1",
                           list(range(8+4*k, 12+4*k))) for k in range(nld)], 38)
        for k in range(1, nld):
            for r in range(4):
                self(f"v_add_f32 v{8+r}, v{8+r}, v{8+4*k+r}")
        self(f"""v_and_b32 v{T}, 3, v{vLANE}
        v_lshlrev_b32 v{T}, 4, v{T}
        v_permlane32_swap_b32 v8, v9
        v_permlane32_swap_b32 v10, v11
        v_lshrrev_b32 v{T+1}, 5, v{vLANE}
        v_lshl_add_u32 v{T}, v{T+1}, 2, v{T}
        v_add_f32 v8, v8, v9
        v_add_f32 v10, v10, v11
        v_and_b32 v{T+1}, 16, v{vLANE}
        v_lshrrev_b32 v{T+1}, 1, v{T+1}
        v_permlane16_swap_b32 v8, v10
        v_add_u32 v{T}, v{T}, v{T+1}
        s_lshl_b32 s{sT0}, s{sWV}, 6
        v_add_f32 v8, v8, v10
        s_add_u32 s{sT0}, s{sT0}, {L_RED}
        v_add_u32 v{T}, s{sT0}, v{T}
        v_add_f32_dpp v8, v8, v8 row_ror:4 row_mask:0xf bank_mask:0xf
        s_nop 1
        v_add_f32_dpp v8, v8, v8 row_ror:8 row_mask:0xf bank_mask:0xf
        ds_write_b32 v{T}, v8
        s_waitcnt lgkmcnt(0)
        s_barrier""")
        done = self.lab("L_reddone")
        self(f"""s_cmp_lg_u32 s{sWV}, 0
        s_cbranch_scc1 {done}
        s_mov_b64 exec, 0xf""")
        self(f"""v_add_u32 v{T}, {L_RED}, v{vL16}
        ds_read_b128 v[8:11], v{T}
        ds_read_b128 v[12:15], v{T} offset:64
        ds_read_b128 v[16:19], v{T} offset:128
        ds_read_b128 v[20:23], v{T} offset:192
        ds_read_b128 v[24:27], v{T} offset:{L_XK-L_RED}
        s_lshl_b32 s{sT0}, s{sT3}, 6
        s_add_u32 s{sT0}, s{sT0}, s{sBLK}
        s_add_u32 s{sT0}, s{sT0}, {xoff}
        s_waitcnt lgkmcnt(0)""")
        for r in range(4):
            self(f"v_add_f32 v{8+r}, v{8+r}, v{12+r}\nv_add_f32 v{16+r}, v{16+r}, v{20+r}")
        for r in range(4):
            self(f"v_add_f32 v{8+r}, v{8+r}, v{16+r}")
        for r in range(4):
            self.bf16r(8 + r, 8 + r)
        for r in range(4):
            self(f"v_add_f32 v{8+r}, v{8+r}, v{24+r}")
        if final_possible:
            nf = self.lab("L_notfinal")
            self(f"""s_cmp_eq_u32 s{sPASS}, 0
            s_cbranch_scc1 {nf}
            v_cvt_pk_bf16_f32 v12, v8, v9
            v_cvt_pk_bf16_f32 v13, v10, v11
            v_lshlrev_b32 v{T+1}, 3, v{vLANE}
            s_lshl_b32 s{sT0}, s{sT3}, 5
            buffer_store_dwordx2 v[12:13], v{T+1}, {sreg(sOUT)}, s{sT0} offen
            s_mov_b64 exec, -1
            s_branch {done}
            {nf}:""")
        for r in range(4):
            self.bf16r(8 + r, 8 + r)
        self(f"""buffer_store_dwordx4 v[8:11], v{vL16}, {sreg(sWS)}, s{sT0} offen sc1
        ds_write_b128 v{T}, v[8:11] offset:{L_XK-L_RED}
        s_waitcnt lgkmcnt(0)
        s_mov_b64 exec, -1
        {done}:""")

    def q_partial(self):
        g = self
        g(f"v_add_u32 v39, s{sWB}, v{vL16}")
        for j in range(3):
            g(f"ds_read_b128 {ar(aQ+4*j)}, v39 offset:{j*1024}")
        for j in range(3):
            g(f"ds_read_b128 {vr(20+4*j)}, v39 offset:{(3+j)*1024}")
        g.ln()
        g.mkA(32, 36)
        g("s_waitcnt lgkmcnt(0)\ns_nop 0")
        for j in range(3):
            g(f"v_mfma_f32_16x16x32_bf16 {vr(vACC+4*j)}, v[32:35], {ar(aQ+4*j)}, 0")
        q2 = g.lab("L_q2")
        g(f"s_cmp_ge_u32 s{sWV}, 2\ns_cbranch_scc1 {q2}")
        for j in range(3):
            g(f"ds_read_b128 {ar(aQ+4*j)}, v39 offset:{(6+j)*1024}")
        g.mkA(32, 38)
        g("s_waitcnt lgkmcnt(0)\ns_nop 0")
        for j in range(3):
            g(f"v_mfma_f32_16x16x32_bf16 {vr(vACC+4*j)}, v[32:35], {ar(aQ+4*j)}, {vr(vACC+4*j)}")
        g(f"{q2}:")
        g.mkA(32, 37)
        g("s_nop 1")
        for j in range(3):
            g(f"v_mfma_f32_16x16x32_bf16 {vr(vACC+4*j)}, v[32:35], {vr(20+4*j)}, {vr(vACC+4*j)}")
        g.part_write()
        g("s_waitcnt lgkmcnt(0)\ns_barrier")

    def q_publish(self, qp):
        g = self
        g(f"v_lshlrev_b32 v32, 2, v{vLANE}\nv_add_u32 v32, {L_PART}, v32")
        for k in range(12):
            g(f"ds_read2st64_b32 v[{8+2*k}:{9+2*k}], v32 offset0:{2*k} offset1:{2*k+1}")
        g(f"s_lshl_b32 s{sT1}, s2, 10\ns_add_u32 s{sT1}, s{sT1}, {qp}\ns_waitcnt lgkmcnt(0)")
        for step in (12, 6, 3):
            for r in range(step):
                g(f"v_add_f32 v{8+r}, v{8+r}, v{8+step+r}")
        g(f"""v_mov_b32 v11, 0
        buffer_store_dwordx4 v[8:11], v{vL16}, {sreg(sWS)}, s{sT1} offen sc1""")

    def q_loads(self, so):
        ws = sreg(sWS)
        lds = [f"buffer_load_dwordx3 v[{8+4*k}:{10+4*k}], v{vL16 if k < 4 else 32}, {ws}, s{so} offen offset:{(k%4)*1024} sc1" for k in range(6)]
        lds += [f"buffer_load_dwordx3 v[34:36], v32, {ws}, s{so} offen offset:2048 sc1",
                f"buffer_load_dword v11, v32, {ws}, s{so} offen offset:3072 sc1",
                f"buffer_load_dword v15, v32, {ws}, s{so} offen offset:3076 sc1",
                f"buffer_load_dword v19, v32, {ws}, s{so} offen offset:3080 sc1"]
        return lds, [8+4*k+r for k in range(6) for r in range(3)] + [34, 35, 36, 11, 15, 19]

    def q_sum(self):
        g = self
        for r in range(3):
            g(f"""v_add_f32 v{8+r}, v{8+r}, v{12+r}
            v_add_f32 v{16+r}, v{16+r}, v{20+r}
            v_add_f32 v{24+r}, v{24+r}, v{28+r}
            v_add_f32 v{34+r}, v{34+r}, v{11+4*r}""")
        for r in range(3):
            g(f"v_add_f32 v{8+r}, v{8+r}, v{16+r}\nv_add_f32 v{24+r}, v{24+r}, v{34+r}")
        g(f"""s_and_b32 s{sT0}, s{sWV}, 1
        s_mul_i32 s{sT0}, s{sT0}, 384
        s_add_u32 s{sT0}, s{sT0}, {L_QB}
        v_lshl_add_u32 v32, v{vLANE}, 1, s{sT0}""")
        for r in range(3):
            g(f"v_add_f32 v{8+r}, v{8+r}, v{24+r}\nv_cvt_pk_bf16_f32 v{8+r}, v{8+r}, v{8+r}\nds_write_b16 v32, v{8+r} offset:{128*r}")

    def seg_a(self, ps):
        g = self
        pols = [(g.polx if (ps == 0 and g.xa[i] == "1") else g.pol) for i in range(3)]
        if ps == 0:
            g(f"s_mul_i32 s{sT0}, s{sWV}, 1536\ns_add_u32 s{sT0}, s{sT0}, {L_PART}")
        else:
            g(f"s_mul_i32 s{sT0}, s{sWV}, {NLDS*UB}\ns_add_u32 s{sT0}, s{sT0}, 16")
        sk = g.lab("L_no42")
        g(f"""s_lshl_b32 s{sT1}, s{sNB}, 4
        s_sub_u32 s{sT0}, s{sT0}, s{sT1}
        s_add_u32 s{sT0}, s{sT0}, {42*16}
        v_lshrrev_b32 v{vSC}, 3, v{vLANE}
        v_lshl_add_u32 v{vSC}, v{vSC}, 1, s{sT0}
        v_mov_b32 v{vMX}, 0xff800000
        v_mov_b32 v{vSV}, 0
        s_waitcnt lgkmcnt(0)
        s_cmp_lg_u32 s{sNB}, 42
        s_cbranch_scc1 {sk}""")
        g.qk_store(buf(kbuf(42)), 0)
        g(f"{sk}:")
        g.qk_store(buf(kbuf(43)), 16)
        g.qk_store(buf(kbuf(44)), 32)
        g.stamp(1)
        top = g.lab("L_kloop")
        g(f"s_mov_b32 s{sLOOP}, {(NK-2)//3}\n.p2align 6\n{top}:")
        for i in range(3):
            g("s_waitcnt vmcnt(3)")
            g.issue((i + 2) % 3, 0, sOFF, pols[(i + 2) % 3])
            g(f"s_add_u32 s{sOFF}, s{sOFF}, {STR}")
            g.qk_store(buf(i), 48 + 16 * i)
        g(f"""v_add_u32 v{vSC}, 48, v{vSC}
        s_sub_u32 s{sLOOP}, s{sLOOP}, 1
        s_cmp_lg_u32 s{sLOOP}, 0
        s_cbranch_scc1 {top}
        s_mov_b32 s{sOFF}, s{sBA}""")
        for i in range(2):
            g("s_waitcnt vmcnt(3)")
            g.issue((i + 2) % 3, 1, sOFF, pols[(i + 2) % 3])
            g(f"s_add_u32 s{sOFF}, s{sOFF}, {STR}")
            g.qk_store(buf(i), 48 + 16 * i)
        g.wavemax(vNEG, vMX)
        g(f"""s_lshl_b32 s{sT1}, s{sNB}, 4
        s_sub_u32 s{sT1}, {42*16 + 16*(NK-2)}, s{sT1}
        v_subrev_u32 v{vSC}, s{sT1}, v{vSC}""")
        top = g.lab("L_vloop")
        g(f"s_mov_b32 s{sLOOP}, {(NK-2)//3}\n.p2align 6\n{top}:")
        for i in range(3):
            g.p_stored(16 * i)
            g("s_waitcnt vmcnt(3)")
            g.issue((i + 1) % 3, 1, sOFF, pols[(i + 1) % 3])
            g(f"s_add_u32 s{sOFF}, s{sOFF}, {STR}")
            g.pv((i + 2) % 3)
        g(f"""v_add_u32 v{vSC}, 48, v{vSC}
        s_sub_u32 s{sLOOP}, s{sLOOP}, 1
        s_cmp_lg_u32 s{sLOOP}, 0
        s_cbranch_scc1 {top}""")
        for i in range(2):
            g.p_stored(16 * i)
            g("s_waitcnt vmcnt(3)")
            if ps == 1 and i == 0:
                g.arrive(0)
            g.issue((i + 1) % 3, 1, sOFF, pols[(i + 1) % 3])
            g(f"s_add_u32 s{sOFF}, s{sOFF}, {STR}")
            g.pv((i + 2) % 3)

    def build(self):
        T = vT
        g = self
        assert (NK - 2) % 3 == 0
        g("s_cmp_ge_u32 s2, 256\ns_cbranch_scc1 L_end")
        g.stamp(0)
        g(f"""s_load_dwordx2 s[{sK}:{sK+1}], s[0:1], 8
        s_load_dwordx2 s[{sX}:{sX+1}], s[0:1], 0
        s_load_dwordx2 s[{sV}:{sV+1}], s[0:1], 16
        s_load_dwordx2 s[{sWQ}:{sWQ+1}], s[0:1], 24
        s_load_dwordx2 s[{sWO}:{sWO+1}], s[0:1], 32
        s_load_dwordx2 s[{sW1}:{sW1+1}], s[0:1], 48
        s_load_dwordx2 s[{sW2}:{sW2+1}], s[0:1], 56
        s_load_dwordx2 s[{sOUT}:{sOUT+1}], s[0:1], 64
        s_load_dwordx2 s[{sDBG}:{sDBG+1}], s[0:1], 72
        s_load_dwordx2 s[{sWS}:{sWS+1}], s[0:1], 80
        v_lshrrev_b32 v1, 6, v0
        v_and_b32 v{vLANE}, 63, v0
        v_readfirstlane_b32 s{sWV}, v1""")
        for s, n in ((sX, 1280), (sK, KVB), (sV, KVB), (sWQ, 640*6144*2), (sWO, 6144*640*2), (sW1, 640*1536*2),
                     (sW2, 1536*640*2), (sOUT, 1280), (sDBG, 256), (sWS, WS_REC)):
            g(f"s_mov_b32 s{s+2}, {n}\ns_mov_b32 s{s+3}, 0x20000")
        g(f"""s_lshr_b32 s{sHQ}, s2, 3
        s_and_b32 s{sS}, s2, 7
        s_lshr_b32 s{sT0}, s2, 5
        s_lshl_b32 s{sT0}, s{sT0}, 3
        s_add_u32 s{sT0}, s{sT0}, s{sS}
        s_and_b32 s{sT1}, s{sHQ}, 3
        s_mul_i32 s{sT2}, s{sT0}, 43
        s_lshr_b32 s{sT3}, s{sT2}, 8
        s_lshr_b32 s{sT2}, s{sT2}, 7
        s_mul_i32 s{sT4}, s{sT2}, 3
        s_sub_u32 s{sT4}, s{sT0}, s{sT4}""")
        g(f"""s_cmp_eq_u32 s{sT4}, 0
        s_cselect_b32 s{sNB}, 42, 43
        s_mul_i32 s{sBA}, s{sT4}, 85
        s_add_u32 s{sBA}, s{sBA}, s{sNB}
        s_sub_u32 s{sBA}, s{sBA}, 42
        s_lshl_b32 s{sOFF}, s{sT2}, 8
        s_add_u32 s{sBA}, s{sBA}, s{sOFF}
        s_lshl_b32 s{sT4}, s{sT4}, 2
        s_add_u32 s{sT4}, s{sT4}, s{sT1}""")
        g(f"""s_mul_i32 s{sLOOP}, s{sT3}, 6
        s_sub_u32 s{sLOOP}, s{sT0}, s{sLOOP}
        s_mul_i32 s{sBB}, s{sLOOP}, 43
        s_cmp_gt_u32 s{sLOOP}, 0
        s_subb_u32 s{sBB}, s{sBB}, 0
        s_cmp_gt_u32 s{sLOOP}, 3
        s_subb_u32 s{sBB}, s{sBB}, 0
        s_add_u32 s{sT3}, s{sT3}, 22
        s_cmp_ge_u32 s{sT0}, 60
        s_cselect_b32 s{sT3}, 21, s{sT3}
        s_cselect_b32 s{sOFF}, 86, 0
        s_addc_u32 s{sLOOP}, s{sLOOP}, 0
        s_add_u32 s{sBB}, s{sBB}, s{sOFF}
        s_lshl_b32 s{sOFF}, s{sT3}, 8
        s_add_u32 s{sBB}, s{sBB}, s{sOFF}
        s_lshl_b32 s{sLOOP}, s{sLOOP}, 2
        s_add_u32 s{sLOOP}, s{sLOOP}, s{sT1}
        s_bitcmp1_b32 s{sWV}, 0
        s_cselect_b32 s{sSEGH}, s{sT3}, s{sT2}
        s_cselect_b32 s{sSEGP}, s{sLOOP}, s{sT4}
        s_lshl_b32 s{sT1}, s{sT1}, 2
        s_add_u32 s{sT1}, s{sT1}, s{sWV}
        s_lshl_b32 s{sBA}, s{sBA}, 4
        s_lshl_b32 s{sBB}, s{sBB}, 4
        s_add_u32 s{sBA}, s{sBA}, s{sT1}
        s_add_u32 s{sBB}, s{sBB}, s{sT1}
        s_mul_i32 s{sBA}, s{sBA}, {UB}
        s_mul_i32 s{sBB}, s{sBB}, {UB}
        s_mov_b32 s{sOFF}, s{sBB}""")
        g(f"""v_bfe_u32 v{vKO}, v{vLANE}, 1, 3
        v_mul_u32_u24 v{vKO}, 384, v{vKO}
        v_and_b32 v{T}, 1, v{vLANE}
        v_lshl_add_u32 v{vKO}, v{T}, 6, v{vKO}
        v_and_b32 v{T}, 48, v{vLANE}
        v_add_u32 v{vKO}, v{vKO}, v{T}
        s_waitcnt lgkmcnt(0)""")

        def keep(k):
            if k in (42, 43):
                g(f"s_cmp_eq_u32 s{sNB}, {k}\ns_cselect_b32 s{sOFF}, s{sBA}, s{sOFF}")
            if kbuf(k) is None:
                for j in range(3):
                    g(f"""s_add_u32 m0, s{sT4}, {(k-LDS0)*UB + j*1024}
                    s_add_u32 s{sT2}, s{sOFF}, {128*j}
                    buffer_load_dwordx4 v{vKO}, {sreg(sK)}, s{sT2} offen{g.pol} lds""")
                g.op(k, 3)
            else:
                g.issue(kbuf(k), 0, sOFF, g.pol, k)
            g(f"s_add_u32 s{sOFF}, s{sOFF}, {STR}")

        keep(0)
        keep(1)
        g(f"""v_lshlrev_b32 v{vL16}, 4, v{vLANE}
        v_lshrrev_b32 v{vVO}, 3, v{vLANE}
        v_mul_u32_u24 v{vVO}, 384, v{vVO}
        v_and_b32 v{T}, 7, v{vLANE}
        v_lshl_add_u32 v{vVO}, v{T}, 4, v{vVO}
        v_and_b32 v{T+1}, 1, v{vLANE}
        v_lshlrev_b32 v{T+1}, 4, v{T+1}
        v_mov_b32 v{T+2}, 0xffff
        v_lshlrev_b32 v{T+1}, v{T+1}, v{T+2}
        v_lshrrev_b32 v{T}, 1, v{T}""")
        for r in range(4):
            g(f"v_cmp_eq_u32 vcc, {r}, v{T}\ns_nop 1\nv_cndmask_b32 v{vMK+r}, 0, v{T+1}, vcc")
        g(f"""s_mov_b32 s{sPASS}, 0
        s_mov_b32 s{sBLK}, {W_B0}
        s_mul_i32 s{sWB}, s{sWV}, 9216
        s_cmp_eq_u32 s{sWV}, 3
        s_cselect_b32 s{sWB}, {WOFF[3]}, s{sWB}
        s_add_u32 s{sWB}, s{sWB}, {L_W}
        s_mul_i32 s{sT4}, s{sWV}, {NLDS*UB}""")
        g(f"""v_lshlrev_b32 v32, 3, v{vLANE}
        v_lshlrev_b32 v33, 2, v{vLANE}
        s_mul_i32 s{sT0}, s{sS}, 10
        s_add_u32 s{sT0}, s{sT0}, s{sWV}
        s_lshl_b32 s{sT0}, s{sT0}, 4
        v_lshrrev_b32 v34, 3, v{vLANE}
        v_lshl_add_u32 v34, v34, 1, s{sT0}
        buffer_load_dwordx2 v[20:21], v32, {sreg(sX)}, 0 offen
        buffer_load_dwordx2 v[22:23], v32, {sreg(sX)}, 0 offen offset:512
        buffer_load_dword v24, v33, {sreg(sX)}, 0 offen offset:1024
        buffer_load_ushort v36, v34, {sreg(sX)}, 0 offen
        buffer_load_ushort v37, v34, {sreg(sX)}, 0 offen offset:64
        buffer_load_ushort v38, v34, {sreg(sX)}, 0 offen offset:128
        s_sub_u32 s{sT0}, s2, {RED0}
        s_lshl_b32 s{sT0}, s{sT0}, 5
        v_lshl_add_u32 v35, v{vLANE}, 1, s{sT0}
        buffer_load_ushort v39, v35, {sreg(sX)}, 0 offen""")
        g.op("x", 7)
        g.dma_wq()
        g(f"""v_mov_b32 v8, -1
        v_mov_b32 v9, -1
        v_mov_b32 v10, -1
        v_mov_b32 v11, -1
        s_lshl_b32 s{sT0}, s2, 2
        s_add_u32 s{sT0}, s{sT0}, s{sWV}
        s_lshl_b32 s{sT1}, s{sT0}, 8
        s_mul_i32 s{sT0}, s{sT0}, {NCLR*1024}
        s_add_u32 s{sT0}, s{sT0}, {W_B0}
        s_mov_b64 exec, 0xffff
        buffer_store_dwordx4 v[8:11], v{vL16}, {sreg(sWS)}, s{sT1} offen sc1
        s_mov_b64 exec, -1""")
        for j in range(NCLR):
            g(f"buffer_store_dwordx4 v[8:11], v{vL16}, {sreg(sWS)}, s{sT0} offen offset:{1024*j} sc1")
        g.op("clr", 1 + NCLR)
        KQ1, KB, KG = 4, 16, 19
        for k in range(2, NF):
            g.wait(k - 2)
            keep(k)
            if k == KQ1:
                assert "clr" not in g.q and "w" not in g.q
                for i in range(5):
                    g(f"v_lshlrev_b32 v{8+2*i}, 16, v{20+i}\nv_and_b32 v{9+2*i}, 0xffff0000, v{20+i}")
                for i in range(3):
                    g(f"v_lshlrev_b32 v{36+i}, 16, v{36+i}")
                g(f"""v_lshlrev_b32 v39, 16, v39
                v_lshlrev_b32 v35, 2, v{vLANE}
                v_add_u32 v35, {L_XK}, v35
                s_mov_b64 exec, 0xffff
                ds_write_b32 v35, v39
                s_mov_b64 exec, -1""")
                g.q_partial()
                g.stamp(9)
            if k == KQ1 + 1:
                sk = g.lab("L_nopub")
                g(f"""s_cmp_lg_u32 s{sWV}, 0
                s_cbranch_scc1 {sk}
                s_mov_b32 s{sT0}, 1
                s_lshl_b32 s{sT1}, s{sHQ}, 3
                s_atomic_add s{sT0}, s[{sDBG}:{sDBG+1}], s{sT1}""")
                g.q_publish(W_QP0)
                g(f"{sk}:")
            if k == KQ1 + 3:
                g.dma_wo()
            ldb = f"buffer_load_dword v32, v33, {sreg(sDBG)}, 0 offen sc1"
            if k == KB:
                g(f"v_and_b32 v33, 31, v{vLANE}\nv_lshlrev_b32 v33, 3, v33\n{ldb}")
                g.op("bar")
            if k == KG:
                assert "bar" not in g.q
                top, chk, done = g.lab("L_bar"), g.lab("L_barc"), g.lab("L_bard")
                g(f"""s_mov_b32 s{sCNT}, {SPIN}
                s_branch {chk}
                {top}:
                {ldb}
                s_waitcnt vmcnt(0)
                {chk}:
                v_cmp_gt_u32 vcc, 8, v32
                s_cbranch_vccz {done}
                s_sub_u32 s{sCNT}, s{sCNT}, 1
                s_cbranch_scc0 {top}
                {done}:
                s_lshl_b32 s{sT3}, s{sSEGH}, 13
                v_add_u32 v32, 4096, v{vL16}""")
                lds, regs = g.q_loads(sT3)
                for ld in lds:
                    g(ld)
                g.op("q", len(lds))
            if k == KG + 3:
                assert "q" not in g.q
                lds, regs = g.q_loads(sT3)
                g.poll(lds, regs, 39, pre=True)
                g.q_sum()
        for i in range(2):
            g.wait(NF - 2 + i)
            g.issue(i, 0, sOFF, g.pol, "r")
            g(f"s_add_u32 s{sOFF}, s{sOFF}, {STR}")
        g("s_waitcnt lgkmcnt(0)\ns_barrier")
        g.load_q(0)
        g.init_softmax()
        g.stamp(10)

        g.seg_a(0)
        pb = lambda k: g.polx if g.xb[k % 3] == "1" else g.pol
        g(f"""s_add_u32 s{sT0}, s{sBB}, {42*STR}
        s_cmp_eq_u32 s{sNB}, 43
        s_cselect_b32 s{sOFF}, s{sT0}, s{sOFF}""")
        g.p_stored(32)
        g("s_waitcnt vmcnt(3)")
        g.issue(0, 1, sOFF, pb(42))
        g.pv(1)
        g(f"s_add_u32 s{sOFF}, s{sBB}, {41*STR}")
        g.p_stored(48)
        g("s_waitcnt vmcnt(3)")
        g.issue(1, 1, sOFF, pb(41))
        g.pv(2)
        g(f"""s_sub_u32 s{sOFF}, s{sOFF}, {STR}
        s_mul_i32 s{sT0}, s{sWV}, {NLDS*UB}
        v_add_u32 v{vLA}, s{sT0}, v{vL16}
        s_mov_b32 s{sT4}, 0
        s_cmp_eq_u32 s{sNB}, 43
        s_cbranch_scc1 L_p1b42""")
        g.p_stored(64)
        g("s_waitcnt vmcnt(3)")
        g.issue(2, 1, sOFF, pb(40))
        g.pv(0)
        g(f"s_call_b64 s[{sRT2}:{sRT2+1}], L_switch\ns_branch L_p1b41\nL_p1b42:")
        g(f"s_call_b64 s[{sRT2}:{sRT2+1}], L_switch")
        g.qk_online(42)
        g("s_waitcnt vmcnt(3)")
        g.issue(2, 1, sOFF, pb(40))
        g.pv(0)
        g("L_p1b41:")
        for k in range(41, -1, -1):
            g.qk_online(k)
            g(f"s_waitcnt vmcnt({3 if k else 0})")
            if k == 3:
                g.arrive(0)
            if k == 1:
                g.arrive(1)
            if k >= 2:
                g(f"s_sub_u32 s{sOFF}, s{sOFF}, {STR}")
                g.issue((2 - k) % 3, 1, sOFF, pb(k - 2))
            else:
                g("s_nop 0")
            g.pv((-k) % 3)
        g(f"s_mov_b32 s{sT4}, 1\ns_branch L_passend")

        g("L_switch:")
        g.stamp(11)
        g.flush()
        g(f"""v_and_b32 v{vT}, 1, v{vLANE}
        v_lshlrev_b32 v{vT}, 6, v{vT}
        v_and_b32 v{vT+1}, 48, v{vLANE}
        s_xor_b32 s{sT0}, s{sT4}, 1
        s_mul_i32 s{sT0}, s{sT0}, 384
        s_add_u32 s{sT0}, s{sT0}, {L_QB}
        v_add3_u32 v{vT}, v{vT}, v{vT+1}, s{sT0}""")
        for j in range(3):
            g(f"ds_read_b128 {ar(aQ+4*j)}, v{vT} offset:{128*j}")
        g("s_waitcnt lgkmcnt(0)")
        g.init_softmax()
        g(f"s_setpc_b64 s[{sRT2}:{sRT2+1}]")
        g.rescale_sub()

        g("L_pass2:")
        g.q = []
        order = list(g.order2) if g.order2 else []
        order += [k for k in range(42) if k not in order]
        assert order[:3] == [0, 1, 2] and order[-2:] == [40, 41]
        where = {0: 0, 1: 2, 2: 1}
        free = []
        nxt = 3

        def fill(depth):
            nonlocal nxt
            while nxt < 42 and free and len([t for t in set(g.q) if isinstance(t, int)]) < depth:
                k = order[nxt]
                b = max(free)
                free.remove(b)
                where[k] = b
                g(f"s_add_u32 s{sOFF}, s{sBB}, {k*STR}")
                g.issue(b, 1, sOFF, g.pol, k)
                nxt += 1

        for i in range(40):
            k = order[i]
            depth = g.burst[min(i, len(g.burst) - 1)] if i < 36 else 2
            g.qk_online(k)
            if kbuf(k) is not None:
                free.append(kbuf(k))
            g.wait(k)
            fill(depth)
            g("s_nop 0")
            g.pv(where[k])
            free.append(where[k])
            if i < 3:
                fill(depth)
            if i == 12:
                g.dma_wo()
        assert nxt == 42 and g.q == [40] * 3 + [41] * 3 and where[40] > 2 and where[41] > 2
        g(f"""s_sub_u32 s{sT0}, {NF}, s{sNB}
        s_mul_i32 s{sT0}, s{sT0}, {STR}
        s_add_u32 s{sT3}, s{sBA}, s{sT0}
        s_mov_b32 s{sT4}, 1
        s_cmp_eq_u32 s{sNB}, 42
        s_cbranch_scc1 L_p2t42""")
        b42 = max(free)
        for tail in ([(40, b42, 1), (41, 0, 0), (42, 1, 0)], [(40, 0, 0), (41, 1, 0)]):
            for k, b, kv in tail:
                g.qk_online(k)
                g("s_waitcnt vmcnt(3)")
                if kv:
                    g(f"s_add_u32 s{sOFF}, s{sBB}, {42*STR}")
                    g.issue(b, 1, sOFF, g.pol)
                else:
                    g.issue(b, 0, sT3, g.pol)
                    g(f"s_add_u32 s{sT3}, s{sT3}, {STR}")
                g.pv(b42 if k == 42 else where[k])
            if len(tail) == 3:
                g("s_branch L_p2a\nL_p2t42:")
        g(f"L_p2a:\ns_mov_b32 s{sOFF}, s{sT3}\ns_call_b64 s[{sRT2}:{sRT2+1}], L_switch")
        g.seg_a(1)
        g.p_stored(32)
        g("s_waitcnt vmcnt(3)")
        g.arrive(1)
        g(f"s_cmp_eq_u32 s{sNB}, 43\ns_cbranch_scc1 L_p2e85")
        g.issue(0, 1, sOFF, g.pol)
        g.pv(1)
        g.p_stored(48)
        g("s_waitcnt vmcnt(3)\ns_nop 0")
        g.pv(2)
        g.p_stored(64)
        g("s_waitcnt vmcnt(0)\ns_nop 0")
        g.pv(0)
        g("s_branch L_p2e\nL_p2e85:")
        g.pv(1)
        g.p_stored(48)
        g("s_waitcnt vmcnt(0)\ns_nop 0")
        g.pv(2)
        g(f"L_p2e:\ns_mov_b32 s{sT4}, 0")

        g("L_passend:")
        g.stamp(2)
        g.flush()
        g("s_waitcnt lgkmcnt(0)\ns_barrier")
        aj = g.lab("L_ajoin")
        g(f"""s_cmp_gt_u32 s{sWV}, 1
        s_cbranch_scc1 {aj}
        s_lshl_b32 s{sT0}, s{sWV}, 5
        s_add_u32 s{sT0}, s{sT0}, {L_ML}
        v_mov_b32 v36, s{sT0}
        s_mul_i32 s{sT0}, s{sWV}, 768
        s_add_u32 s{sT0}, s{sT0}, {L_PART}
        ds_read_b128 v[32:35], v36
        ds_read_b128 v[36:39], v36 offset:16
        v_lshl_add_u32 v30, v{vLANE}, 2, s{sT0}""")
        offs = [6 * w + j for w in range(4) for j in range(3)]
        for k in range(6):
            g(f"ds_read2st64_b32 v[{8+2*k}:{9+2*k}], v30 offset0:{offs[2*k]} offset1:{offs[2*k+1]}")
        g(f"""s_mul_i32 s{sT0}, s{sSEGH}, {8*3072}
        s_lshl_b32 s{sT1}, s{sSEGP}, 7
        s_add_u32 s{sT0}, s{sT0}, s{sT1}
        s_add_u32 s{sT0}, s{sT0}, s{sBLK}
        v_lshrrev_b32 v20, 3, v{vLANE}
        v_mul_u32_u24 v20, 3072, v20
        v_and_b32 v21, 7, v{vLANE}
        v_lshl_add_u32 v20, v21, 4, v20
        v_and_b32 v21, 1, v{vLANE}
        v_cmp_eq_u32 vcc, 1, v21
        s_waitcnt lgkmcnt(0)
        v_max3_f32 v21, v32, v34, v36
        v_max_f32 v21, v21, v38
        v_sub_f32 v32, v32, v21
        v_sub_f32 v34, v34, v21
        v_sub_f32 v36, v36, v21
        v_sub_f32 v38, v38, v21
        v_exp_f32 v32, v32
        v_exp_f32 v34, v34
        v_exp_f32 v36, v36
        v_exp_f32 v38, v38
        v_mul_f32 v33, v33, v32""")
        for j in range(3):
            g(f"v_mul_f32 v{8+j}, v{8+j}, v32")
        for w in range(1, 4):
            g(f"v_fmac_f32 v33, v{33+2*w}, v{32+2*w}")
            for j in range(3):
                g(f"v_fmac_f32 v{8+j}, v{8+3*w+j}, v{32+2*w}")
        g(f"""v_cndmask_b32 v11, v21, v33, vcc
        buffer_store_dwordx4 v[8:11], v20, {sreg(sWS)}, s{sT0} offen offset:{B_AP} sc1
        {aj}:""")
        g.stamp(3)

        def stage_wo(nl):
            g(f"v_add_u32 v39, s{sWB}, v{vL16}")
            for i in range(nl):
                g(f"ds_read_b128 {ar(aQ+4*i)}, v39 offset:{i*1024}")
            for i in range(nl):
                g(f"ds_read_b128 {vr(20+4*i)}, v39 offset:{(nl+i)*1024}")
            g(f"""v_and_b32 v36, 7, v{vLANE}
            v_lshlrev_b32 v36, 7, v36
            v_lshrrev_b32 v37, 3, v{vLANE}
            v_lshl_add_u32 v36, v37, 4, v36
            s_mul_i32 s{sT0}, s2, 3072
            s_add_u32 s{sT0}, s{sT0}, s{sBLK}
            s_mov_b64 {sreg(sMK, 2)}, -1
            s_cmp_lt_u32 s{sHQ}, 21
            s_cselect_b32 s{sMK+2}, 0x0f0f0f0f, -1
            s_cselect_b32 s{sMK+4}, 0, -1
            s_cmp_eq_u32 s{sHQ}, 21
            s_cselect_b32 s{sMK+4}, 0x0f0f0f0f, s{sMK+4}
            s_mov_b32 s{sMK+3}, s{sMK+2}
            s_mov_b32 s{sMK+5}, s{sMK+4}
            v_and_b32 v37, 8, v{vLANE}
            v_cmp_eq_u32 vcc, 0, v37
            v_mov_b32 v37, 0xff800000""")
            for r in (12, 13, 14, 16, 17, 18):
                g(f"v_mov_b32 v{r}, 0")
            g("v_cndmask_b32 v15, 0, v37, vcc\nv_cndmask_b32 v19, 0, v37, vcc")
            g.poll_masked([(f"buffer_load_dwordx4 {vr(8+4*k)}, v36, {sreg(sWS)}, s{sT0} offen offset:{B_AP + 1024*k} sc1",
                            list(range(8+4*k, 12+4*k))) for k in range(3)], 37)
            g.stamp(4)
            dp = ("quad_perm:[1,0,3,2]", "quad_perm:[2,3,0,1]", "row_half_mirror")
            for k in range(3):
                g(f"v_mov_b32 v{32+k}, v{11+4*k}")
            for k in range(3):
                g(f"v_mov_b32_dpp v{32+k}, v{11+4*k} row_ror:8 row_mask:0xf bank_mask:0xc")
            for k in range(3):
                g(f"v_mov_b32_dpp v{11+4*k}, v{11+4*k} row_ror:8 row_mask:0xf bank_mask:0x3")
            g("v_max3_f32 v35, v32, v33, v34")
            for d in dp:
                g(f"s_nop 1\nv_max_f32_dpp v35, v35, v35 {d} row_mask:0xf bank_mask:0xf")
            for k in range(3):
                g(f"v_sub_f32 v{32+k}, v{32+k}, v35")
            for k in range(3):
                g(f"v_exp_f32 v{32+k}, v{32+k}")
            for r in range(4):
                g(f"v_mul_f32 v{8+r}, v{8+r}, v32")
            for k in (1, 2):
                for r in range(4):
                    g(f"v_fmac_f32 v{8+r}, v{8+4*k+r}, v{32+k}")
            for d in dp:
                for r in range(4):
                    g(f"v_add_f32_dpp v{8+r}, v{8+r}, v{8+r} {d} row_mask:0xf bank_mask:0xf")
            g("v_rcp_f32 v11, v11\ns_nop 0")
            for j in range(3):
                g(f"v_mul_f32 v{8+j}, v{8+j}, v11\nv_cvt_pk_bf16_f32 v{36+j}, v{8+j}, v{8+j}")
            g.mkA(32, 36)
            g("s_waitcnt lgkmcnt(0)\ns_nop 0")
            for i in range(nl):
                g(f"v_mfma_f32_16x16x32_bf16 {vr(vACC+4*i)}, v[32:35], {ar(aQ+4*i)}, 0")
            for i in range(nl):
                g(f"ds_read_b128 {ar(aQ+4*i)}, v39 offset:{(2*nl+i)*1024}")
            g.mkA(32, 37)
            g("s_nop 1")
            for i in range(nl):
                g(f"v_mfma_f32_16x16x32_bf16 {vr(vACC+4*i)}, v[32:35], {vr(20+4*i)}, {vr(vACC+4*i)}")
            g.mkA(32, 38)
            g("s_waitcnt lgkmcnt(0)\ns_nop 0")
            for i in range(nl):
                g(f"v_mfma_f32_16x16x32_bf16 {vr(vACC+4*i)}, v[32:35], {ar(aQ+4*i)}, {vr(vACC+4*i)}")
            g.publish_y(nl, B_Y1, 256, 2)
        g.by_nl(stage_wo)
        g.stamp(5)
        g(f"s_cmp_ge_u32 s2, {NFFN}\ns_cbranch_scc1 L_notffn")

        g.ffn_index()
        g.dma_ffn()
        g.gatewait()
        g("s_waitcnt vmcnt(0)")

        def stage_ffn(nl):
            g(f"v_add_u32 v39, s{sWB}, v{vL16}")
            for i in range(nl):
                g(f"ds_read_b128 {vr(20+4*i)}, v39 offset:{i*1024}")
            for i in range(nl):
                g(f"ds_read_b128 {ar(aQ+4*i)}, v39 offset:{(nl+i)*1024}")
            g.x_gather(B_X1, "ffn")
            g.stamp(6)
            g.ln()
            g("s_waitcnt lgkmcnt(0)")
            for i in range(nl):
                g(f"v_and_b32 v32, 0xffff, v{36+i}\nv_and_b32 v33, 0xffff0000, v{36+i}")
                for e in range(8):
                    c = f"v{8+e}" if i else "0"
                    g(f"v_dot2_f32_bf16 v{8+e}, v{20+4*i+e//2}, v{32+(e&1)}, {c}")
                g("s_nop 2")
            for e in range(4):
                g(f"v_permlane32_swap_b32 v{8+e}, v{12+e}")
            for e in range(4):
                g(f"v_add_f32 v{8+e}, v{8+e}, v{12+e}")
            g(f"""v_lshrrev_b32 v32, 3, v{vLANE}
            v_lshlrev_b32 v32, 4, v32
            v_permlane16_swap_b32 v8, v10
            v_permlane16_swap_b32 v9, v11
            v_add_u32 v32, {L_HP}, v32
            v_add_f32 v8, v8, v10
            v_add_f32 v9, v9, v11
            s_lshl_b32 s{sT0}, s{sWV}, 2
            v_add_u32 v33, s{sT0}, v32
            v_add_f32_dpp v10, v8, v8 row_ror:8 row_mask:0xf bank_mask:0x3
            s_nop 1
            v_add_f32_dpp v10, v9, v9 row_ror:8 row_mask:0xf bank_mask:0xc
            s_nop 1
            v_add_f32_dpp v10, v10, v10 quad_perm:[1,0,3,2] row_mask:0xf bank_mask:0xf
            s_nop 1
            v_add_f32_dpp v10, v10, v10 quad_perm:[2,3,0,1] row_mask:0xf bank_mask:0xf
            s_nop 1
            v_add_f32_dpp v10, v10, v10 row_half_mirror row_mask:0xf bank_mask:0xf
            ds_write_b32 v33, v10
            s_waitcnt lgkmcnt(0)
            s_barrier
            ds_read_b128 v[8:11], v32
            s_waitcnt lgkmcnt(0)
            v_add_f32 v8, v8, v9
            v_add_f32 v10, v10, v11
            v_add_f32 v8, v8, v10""")
            g.bf16r(8, 8)
            g(f"""v_mul_f32 v9, {NLOG2E:#x}, v8
            v_exp_f32 v9, v9
            s_nop 0
            v_add_f32 v9, 1.0, v9
            v_rcp_f32 v9, v9
            s_nop 0
            v_mul_f32 v8, v8, v9
            v_cvt_pk_bf16_f32 v36, v8, v8""")
            g.mkA(32, 36)
            g("s_nop 1")
            for i in range(nl):
                g(f"v_mfma_f32_16x16x32_bf16 {vr(vACC+4*i)}, v[32:35], {ar(aQ+4*i)}, 0")
            g.publish_y(nl, B_Y2, NFFN, sT3)
        g.by_nl(stage_ffn)
        g.stamp(7)
        g(f"s_cmp_lg_u32 s{sPASS}, 0\ns_cbranch_scc1 L_fin")
        g.dma_wq()
        g("s_branch L_getx2")

        g("L_notffn:")
        nq = g.lab("L_nowq")
        g(f"s_cmp_eq_u32 s{sPASS}, 0\ns_cbranch_scc1 {nq}\ns_cmp_ge_u32 s2, {RED0+NRED}\ns_cbranch_scc1 L_fin\ns_branch L_red\n{nq}:")
        g.dma_wq()
        g("L_red:")
        g.gatewait()
        g(f"s_cmp_ge_u32 s2, {RED0+NRED}\ns_cbranch_scc1 L_getx2")
        g.reducer(B_Y1, 256, False, B_X1)
        g.stamp(6)
        g("s_barrier")
        g.reducer(B_Y2, NFFN, True, B_X2)
        g.stamp(7)
        g(f"s_cmp_lg_u32 s{sPASS}, 0\ns_cbranch_scc1 L_fin")

        g("L_getx2:")
        g.x_gather(B_X2, "q")
        g.stamp(8)
        g.dump_stamps()
        g(f"s_mov_b32 s{sBLK}, {W_B1}\ns_mov_b32 s{sPASS}, 1")
        g.q_partial()
        g.stamp(9)
        qj, q1 = g.lab("L_qjoin"), g.lab("L_q1")
        g(f"s_cmp_gt_u32 s{sWV}, 1\ns_cbranch_scc1 {qj}\ns_cmp_eq_u32 s{sWV}, 1\ns_cbranch_scc1 {q1}")
        g.q_publish(W_B0 + B_QP)
        g(f"""{q1}:
        s_lshl_b32 s{sT3}, s{sSEGH}, 13
        s_add_u32 s{sT3}, s{sT3}, {W_B0 + B_QP}
        v_add_u32 v32, 4096, v{vL16}
        s_nop 0""")
        lds, regs = g.q_loads(sT3)
        g.poll(lds, regs, 39)
        g.q_sum()
        g(f"s_waitcnt lgkmcnt(0)\n{qj}:\ns_waitcnt vmcnt(0)\ns_barrier")
        g.load_q(1)
        g.init_softmax()
        g(f"""s_mul_i32 s{sT0}, s{sWV}, {NLDS*UB}
        v_add_u32 v{vLA}, s{sT0}, v{vL16}""")
        g.stamp(10)
        g("s_waitcnt lgkmcnt(0)\ns_branch L_pass2")
        g("L_fin:")
        g("s_waitcnt vmcnt(0)")
        g.stamp(8)
        g.dump_stamps()
        g("s_waitcnt vmcnt(0)")
        g("L_end:\ns_endpgm")

        out = HEADER + f"; @launch grid=(256,1,1) block=(256,1,1) lds={LDS_BYTES}\n"
        out += f'.amdgcn_target "amdgcn-amd-amdhsa--gfx950"\n.text\n.globl {KN}\n.p2align 8\n.type {KN},@function\n{KN}:\n'
        out += "\n".join(self.L) + "\n"
        out += f""".section .rodata,"a"
.p2align 6
.amdhsa_kernel {KN}
  .amdhsa_next_free_vgpr 512
  .amdhsa_next_free_sgpr 102
  .amdhsa_accum_offset 256
  .amdhsa_group_segment_fixed_size 0
  .amdhsa_kernarg_size 88
  .amdhsa_user_sgpr_count 2
  .amdhsa_user_sgpr_kernarg_segment_ptr 1
  .amdhsa_system_sgpr_workgroup_id_x 1
.end_amdhsa_kernel
"""
        return out


def parse(spec):
    kw = {}
    if spec:
        for kv in spec.split(","):
            k, v = kv.split("=")
            if k not in ("xa", "xb"):
                try:
                    v = ast.literal_eval(v.replace(":", ","))
                except Exception:
                    pass
            if "pol" in k:
                v = "" if v == "def" else v.replace("+", " ")
            kw[k] = v
    return kw


if __name__ == "__main__":
    open(sys.argv[1], "w").write(Gen(**parse(sys.argv[2] if len(sys.argv) > 2 else "")).build())
```

```python
import sys, ast, copy

KN = "interleave_layers__mha_block_cached__dense_activation_silu__decode_kernel"

HEADER = """; Kernarg layout for this problem (88 bytes, ptrs only, base s[0:1]):
"""

KVB = 402653184
UB = 3072
STR = 16 * UB
NF = 46
LDS0, NLDS = 20, 11
NK = 128 - NF
L_W = 4 * NLDS * UB
L_S = L_W + 20480
L_PART = L_S
L_RED = L_PART
L_HP = L_PART
L_XS = L_PART + 3072
L_ML = L_PART + 6144
L_QB = L_ML + 128
L_XK = L_QB + 1152
L_END = L_XK + 128
LDS_BYTES = 163840
assert L_END <= LDS_BYTES
K1 = 1024
W_QP0 = 0
W_B0 = 256 * K1
B_AP = 0
B_Y1 = 768 * K1
B_Y2 = B_Y1 + 640 * K1
B_X1 = B_Y2 + 480 * K1
XREP = 8
B_DN = B_X1 + XREP * 2560
B_X2 = B_DN + 18 * K1
B_QP = B_X2 + XREP * 2560
B_SIZE = B_QP + 192 * K1
W_B1 = W_B0 + B_SIZE
NCLR = 4
assert W_B1 + B_X2 <= W_B0 + NCLR * 1024 * K1
W_STAMP = 6144 * K1
WS_REC = 8192 * K1
NRED = 20
RED0 = 192
NFFN = 192
SCALE = 0x3d93cd3a
LOG2E = 0x3fb8aa3b
NLOG2E = 0xbfb8aa3b
INV640 = 0x3acccccd
EPS = 0x3727c5ac
SPIN = 400000

sK, sV, sWS, sWQ, sWO, sW1, sW2, sX, sOUT, sDBG = 4, 8, 12, 16, 20, 24, 28, 32, 36, 40
sHQ, sS, sWV = 44, 45, 46
sBA, sBB = 47, 48
sNB = 49
sOFF = 50
sLOOP = 51
sM = 52
sPASS = 53
sRET = 54
sBLK = 56
sSEGH = 57
sWB = 58
sCNT = 59
sT0, sT1, sT2, sT3, sT4, sSEGP = 60, 61, 62, 63, 64, 65
sRT2 = 66
sMK = 68
MASKS = [68, 70, 72, 74, 24, 26, 28, 30]
sST = 76

vLANE, vKO, vVO, vL16 = 0, 1, 2, 3
vMK = 4
vACC = 8
vD = 20
vP = 24
vNEG, vLS = 28, 29
vT = 30
vLA, vSC, vSV, vMX = 32, 33, 34, 35
aQ = 240


def sreg(n, k=4):
    return f"s[{n}:{n+k-1}]"


def vr(n, k=4):
    return f"v[{n}:{n+k-1}]" if k > 1 else f"v{n}"


def ar(n, k=4):
    return f"a[{n}:{n+k-1}]" if k > 1 else f"a{n}"


def buf(b):
    if b < 18:
        return [vr(40 + 12 * b + 4 * i) for i in range(3)]
    return [ar(12 * (b - 18) + 4 * i) for i in range(3)]


def kbuf(k):
    if k < LDS0:
        return 3 + k
    if k < LDS0 + NLDS:
        return None
    return 3 + k - NLDS


STAGE = [ar(252), vr(36), vr(vP)]


def vbslot(k):
    return (NK + 85 + 42 - k) % 3


WOG = [buf(vbslot(2)), buf(vbslot(1)), [ar(aQ), ar(aQ + 4), ar(aQ + 8)]]


class Gen:
    def __init__(self, pol="nt", polx="nt", wpol="nt", stamps=False, burst=(2,), gate=0, xa="100", xb="100", order2=None, touch=0, pad=0, xw=1, xrep=8, pre=0, l2=(), qd=0):
        self.l2 = l2
        self.qd = qd
        self.xw = xw
        self.xrep = xrep
        self.pre = pre
        self.pad = pad
        self.touch = touch
        self.L = []
        self.pol = (" " + pol) if pol else ""
        self.polx = (" " + polx) if polx else ""
        self.wpol = (" " + wpol) if wpol else ""
        self.stamps = stamps
        self.uid = 0
        self.q = []
        self.burst = (burst,) if isinstance(burst, int) else tuple(burst)
        self.gate = gate
        self.xa = str(xa).zfill(3)
        self.xb = str(xb).zfill(3)
        self.order2 = order2

    def __call__(self, s):
        for line in s.strip("\n").split("\n"):
            line = line.strip()
            if line:
                self.L.append(line if line.endswith(":") else "    " + line)

    def lab(self, p="L"):
        self.uid += 1
        return f"{p}_{self.uid}"

    def op(self, tag, n=1):
        self.q += [tag] * n

    def wait(self, tag):
        if tag not in self.q:
            return
        last = len(self.q) - 1 - self.q[::-1].index(tag)
        self.q = self.q[last + 1:]
        assert len(self.q) < 64
        self(f"s_waitcnt vmcnt({len(self.q)})")

    def stamp(self, idx):
        if self.stamps:
            assert idx < 12
            self(f"s_memrealtime s[{sST+2*idx}:{sST+2*idx+1}]")

    def dump_stamps(self, part=3, ps=1):
        if not self.stamps:
            return
        if part & 1:
            self("s_waitcnt lgkmcnt(0)")
            for i in range(12):
                self(f"v_writelane_b32 v{vT}, s{sST+2*i}, {i}")
            self(f"v_accvgpr_write_b32 a252, v{vT}")
        if part & 2:
            self(f"""s_nop 1
            v_accvgpr_read_b32 v{vT}, a252
            s_getreg_b32 s{sT0}, hwreg(HW_REG_XCC_ID)
            v_writelane_b32 v{vT}, s{sT0}, 15
            s_lshl_b32 s{sT0}, s2, 2
            s_add_u32 s{sT0}, s{sT0}, s{sWV}
            s_lshl_b32 s{sT0}, s{sT0}, 7
            s_add_u32 s{sT0}, s{sT0}, {W_STAMP + 64*ps}
            v_lshlrev_b32 v{vT+1}, 2, v{vLANE}
            s_mov_b64 exec, 0xffff
            buffer_store_dword v{vT}, v{vT+1}, {sreg(sWS)}, s{sT0} offen
            s_mov_b64 exec, -1""")

    def maxall(self, regs, tmp):
        r = list(regs)
        if len(r) % 2 == 0:
            self(f"v_max_u32 v{tmp}, v{r[0]}, v{r[1]}")
            r = r[2:]
        else:
            self(f"v_max3_u32 v{tmp}, v{r[0]}, v{r[1]}, v{r[2]}")
            r = r[3:]
        while r:
            self(f"v_max3_u32 v{tmp}, v{tmp}, v{r[0]}, v{r[1]}")
            r = r[2:]

    def poll(self, loads, regs, tmp, pre=False):
        top, chk, done = self.lab("L_poll"), self.lab("L_chk"), self.lab("L_got")
        self(f"s_mov_b32 s{sCNT}, {SPIN}")
        if pre:
            self(f"s_branch {chk}")
        self(f"{top}:")
        for ld in loads:
            self(ld)
        self(f"s_waitcnt vmcnt(0)\n{chk}:")
        self.maxall(regs, tmp)
        self(f"""v_cmp_eq_u32 vcc, -1, v{tmp}
        s_cbranch_vccz {done}
        s_sub_u32 s{sCNT}, s{sCNT}, 1
        s_cbranch_scc0 {top}
        {done}:""")

    def poll_masked(self, loads, tmp, live=None):
        top, done = self.lab("L_poll"), self.lab("L_got")
        M = lambda k: sreg(MASKS[k], 2)
        self(f"s_mov_b32 s{sCNT}, {SPIN}\n{top}:")
        for k, (ld, _) in enumerate(loads):
            self(f"s_mov_b64 exec, {M(k)}\n{ld}")
        self("s_mov_b64 exec, -1")
        if live is not None:
            self(f"s_mov_b32 exec_hi, {live:#x}")
        for k, (_, regs) in enumerate(loads):
            if k in (0, 3):
                self(f"s_waitcnt vmcnt({len(loads) - 3 if (k == 0 and len(loads) > 3) else 0})")
            self.maxall(regs, tmp + (k & 1))
            self(f"v_cmp_eq_u32 {M(k)}, -1, v{tmp + (k & 1)}")
            if k == 2:
                self(f"s_or_b64 vcc, {M(0)}, {M(1)}")
            if k > 2:
                self(f"s_or_b64 vcc, vcc, {M(k-1)}")
        self(f"""s_or_b64 vcc, vcc, {M(len(loads)-1)}
        s_cbranch_scc0 {done}
        s_sub_u32 s{sCNT}, s{sCNT}, 1
        s_cbranch_scc0 {top}
        {done}:""")

    def bf16r(self, d, s):
        self(f"v_cvt_pk_bf16_f32 v{d}, v{s}, v{s}\nv_and_b32 v{d}, 0xffff0000, v{d}")

    def mkA(self, dst, src):
        for r in range(4):
            self(f"v_and_b32 v{dst+r}, v{vMK+r}, v{src}")

    def issue(self, b, kv, so, pol, tag=None):
        srd, vo = (sK, vKO) if kv == 0 else (sV, vVO)
        for j, r in enumerate(buf(b)):
            self(f"buffer_load_dwordx4 {r}, v{vo}, {sreg(srd)}, s{so} offen offset:{128*j}{pol}")
        if tag is not None:
            self.op(tag, 3)

    def score(self, regs):
        T = vT
        self(f"""v_mfma_f32_16x16x32_bf16 {vr(vD)}, {regs[0]}, {ar(aQ)}, 0
        v_mfma_f32_16x16x32_bf16 {vr(vD)}, {regs[1]}, {ar(aQ+4)}, {vr(vD)}
        v_mfma_f32_16x16x32_bf16 {vr(vD)}, {regs[2]}, {ar(aQ+8)}, {vr(vD)}
        s_nop 7
        v_add_f32_dpp v{T}, v{vD+1}, v{vD} quad_perm:[1,0,3,2] row_mask:0xf bank_mask:0x3
        s_nop 1
        v_add_f32_dpp v{T}, v{vD+3}, v{vD+2} quad_perm:[1,0,3,2] row_mask:0xf bank_mask:0xc
        s_nop 1
        v_mov_b32_dpp v{T+1}, v{T} quad_perm:[0,0,2,2] row_mask:0xf bank_mask:0xf""")
        self.bf16r(T + 1, T + 1)
        self(f"v_mul_f32 v{T+1}, {SCALE:#x}, v{T+1}\nv_cvt_pk_bf16_f32 v{T+1}, v{T+1}, v{T+1}")

    def qk_store(self, regs, off):
        self.score(regs)
        self(f"""ds_write_b16 v{vSC}, v{vT+1} offset:{off}
        v_and_b32 v{vT}, 0xffff0000, v{vT+1}
        v_max_f32 v{vMX}, v{vMX}, v{vT}""")

    def prob(self, src):
        T = vT
        self(f"""v_fmamk_f32 v{T+1}, v{src}, {LOG2E:#x}, v{vNEG}
        v_exp_f32 v{T+1}, v{T+1}
        s_nop 0
        v_add_f32 v{vLS}, v{vLS}, v{T+1}
        v_cvt_pk_bf16_f32 v{T+1}, v{T+1}, v{T+1}""")
        self.mkA(vP, T + 1)

    def qk_online(self, k):
        if kbuf(k) is None:
            for i in range(3):
                self(f"ds_read_b128 {STAGE[i]}, v{vLA} offset:{(k-LDS0)*UB + i*1024}")
            self("s_waitcnt lgkmcnt(0)")
            self.score(STAGE)
        else:
            self.score(buf(kbuf(k)))
        sk = self.lab("L_nors")
        self(f"""v_and_b32 v{vT+1}, 0xffff0000, v{vT+1}
        v_cmp_lt_f32 vcc, s{sM}, v{vT+1}
        s_cbranch_vccz {sk}
        s_call_b64 s[{sRET}:{sRET+1}], L_rescale
        {sk}:""")
        self.prob(vT + 1)

    def p_stored(self, off):
        self(f"ds_read_u16_d16_hi v{vSV}, v{vSC} offset:{off}\ns_waitcnt lgkmcnt(0)")
        self.prob(vSV)

    def pv(self, b):
        for j, r in enumerate(buf(b)):
            self(f"v_mfma_f32_16x16x32_bf16 {vr(vACC+4*j)}, {vr(vP)}, {r}, {vr(vACC+4*j)}")

    def wavemax(self, d, s):
        self(f"""s_nop 1
        v_max_f32_dpp v{d}, v{s}, v{s} row_ror:8 row_mask:0xf bank_mask:0xf
        s_nop 1
        v_max_f32_dpp v{d}, v{d}, v{d} row_bcast:15 row_mask:0xa bank_mask:0xf
        s_nop 1
        v_max_f32_dpp v{d}, v{d}, v{d} row_bcast:31 row_mask:0xc bank_mask:0xf
        s_nop 1
        v_readlane_b32 s{sM}, v{d}, 63
        s_nop 1
        v_mov_b32 v{d}, s{sM}
        v_mul_f32 v{d}, {NLOG2E:#x}, v{d}""")

    def rescale_sub(self):
        self("L_rescale:")
        self.wavemax(vD, vT + 1)
        self(f"""v_sub_f32 v{vD+1}, v{vD}, v{vNEG}
        v_exp_f32 v{vD+1}, v{vD+1}
        v_mov_b32 v{vNEG}, v{vD}
        v_mul_f32 v{vLS}, v{vLS}, v{vD+1}""")
        for r in range(12):
            self(f"v_mul_f32 v{vACC+r}, v{vACC+r}, v{vD+1}")
        self(f"s_setpc_b64 s[{sRET}:{sRET+1}]")

    def init_softmax(self):
        for r in range(12):
            self(f"v_mov_b32 v{vACC+r}, 0")
        self(f"""v_mov_b32 v{vLS}, 0
        v_mov_b32 v{vNEG}, 0x7f800000
        s_mov_b32 s{sM}, 0xff800000""")

    def load_q(self, seg):
        self(f"""v_and_b32 v{vT}, 1, v{vLANE}
        v_lshlrev_b32 v{vT}, 6, v{vT}
        v_and_b32 v{vT+1}, 48, v{vLANE}
        v_add_u32 v{vT}, v{vT}, v{vT+1}
        v_add_u32 v{vT}, {L_QB + 384*seg}, v{vT}""")
        for j in range(3):
            self(f"ds_read_b128 {ar(aQ+4*j)}, v{vT} offset:{128*j}")

    def flush(self):
        T = vT
        self(f"""v_add_f32_dpp v{vLS}, v{vLS}, v{vLS} row_ror:8 row_mask:0xf bank_mask:0xf
        v_sub_f32 v{vNEG}, 0, v{vNEG}
        s_lshl_b32 s{sT0}, s{sT4}, 2
        v_add_f32_dpp v{vLS}, v{vLS}, v{vLS} row_bcast:15 row_mask:0xa bank_mask:0xf
        s_add_u32 s{sT0}, s{sT0}, s{sWV}
        s_lshl_b32 s{sT0}, s{sT0}, 3
        v_add_f32_dpp v{vLS}, v{vLS}, v{vLS} row_bcast:31 row_mask:0xc bank_mask:0xf
        s_add_u32 s{sT0}, s{sT0}, {L_ML}
        v_mov_b32 v{T}, s{sT0}
        s_mov_b32 exec_lo, 0
        s_mov_b32 exec_hi, 0x80000000
        ds_write_b64 v{T}, v[{vNEG}:{vLS}]
        s_mov_b64 exec, -1
        s_lshl_b32 s{sT0}, s{sWV}, 1
        s_add_u32 s{sT0}, s{sT0}, s{sT4}
        s_mul_i32 s{sT0}, s{sT0}, 768
        s_add_u32 s{sT0}, s{sT0}, {L_PART}
        v_lshrrev_b32 v{T+1}, 5, v{vLANE}
        v_lshl_add_u32 v{T+1}, v{T+1}, 8, s{sT0}
        v_and_b32 v{vP}, 7, v{vLANE}
        v_lshl_add_u32 v{T+1}, v{vP}, 5, v{T+1}
        v_and_b32 v{vP}, 16, v{vLANE}
        v_add_u32 v{T+1}, v{T+1}, v{vP}""")
        self.parity(3)
        self(f"""s_mov_b32 exec_lo, 0x00ff00ff
        s_mov_b32 exec_hi, 0x00ff00ff
        ds_write_b128 v{T+1}, {vr(vACC)}
        s_mov_b32 exec_hi, 0
        ds_write_b128 v{T+1}, {vr(vACC+8)} offset:512
        s_mov_b64 exec, -1""")

    def parity(self, nl):
        for r in range(4):
            self(f"v_permlane32_swap_b32 v{vACC+r}, v{vACC+4+r}")
        if nl == 3:
            for r in range(4):
                self(f"v_permlane32_swap_b32 v{vACC+8+r}, v{vD+r}")
        else:
            self("s_nop 0")
        for r in range(4):
            self(f"v_add_f32_dpp v{vACC+r}, v{vACC+4+r}, v{vACC+r} row_ror:8 row_mask:0xf bank_mask:0xf")
        if nl == 3:
            for r in range(4):
                self(f"v_add_f32_dpp v{vACC+8+r}, v{vD+r}, v{vACC+8+r} row_ror:8 row_mask:0xf bank_mask:0xf")

    def arrive(self, step):
        if self.pre & 1 and step == 0:
            sk = self.lab("L_notouch")
            self(f"""s_cmp_lg_u32 s{sWV}, 2
            s_cbranch_scc1 {sk}
            s_mul_i32 s{sT0}, s2, 3072
            s_add_u32 s{sT0}, s{sT0}, s{sBLK}
            v_lshlrev_b32 v37, 7, v{vLANE}
            s_mov_b64 exec, 0xffffff
            buffer_load_dword v38, v37, {sreg(sWS)}, s{sT0} offen sc1
            s_mov_b64 exec, -1
            {sk}:""")
        if self.pre & 2 and step == 0:
            sk = self.lab("L_notouch")
            self(f"""s_sub_u32 s{sT0}, s2, {RED0}
            s_cmp_ge_u32 s{sT0}, {NRED}
            s_cbranch_scc1 {sk}
            s_cmp_ge_u32 s{sWV}, 2
            s_cbranch_scc1 {sk}
            s_lshl_b32 s{sT0}, s{sT0}, 1
            s_add_u32 s{sT0}, s{sT0}, s{sWV}
            s_lshl_b32 s{sT0}, s{sT0}, 13
            s_add_u32 s{sT0}, s{sT0}, s{sBLK}
            s_add_u32 s{sT0}, s{sT0}, {B_Y1}
            v_lshlrev_b32 v37, 7, v{vLANE}
            buffer_load_dword v38, v37, {sreg(sWS)}, s{sT0} offen sc1
            {sk}:""")
        if not self.gate:
            return
        sk = self.lab("L_noarr")
        self(f"s_cmp_lg_u32 s{sWV}, 3\ns_cbranch_scc1 {sk}")
        if step == 0:
            self(f"""s_lshl_b32 s{sT0}, s{sS}, 8
            s_add_u32 s{sT0}, s{sT0}, s{sBLK}
            s_add_u32 s{sT0}, s{sT0}, {B_DN}
            v_mov_b32 v36, 1
            v_mov_b32 v37, 0
            s_mov_b64 exec, 1
            buffer_atomic_add v36, v37, {sreg(sWS)}, s{sT0} offen sc0 sc1
            s_mov_b64 exec, -1""")
        else:
            self(f"""v_readfirstlane_b32 s{sT0}, v36
            v_lshlrev_b32 v37, 8, v{vLANE}
            v_mov_b32 v36, 1
            s_cmp_lg_u32 s{sT0}, 30
            s_cbranch_scc1 {sk}
            s_add_u32 s{sT0}, s{sBLK}, {B_DN + 2048}
            buffer_atomic_add v36, v37, {sreg(sWS)}, s{sT0} offen sc1""")
        self(f"{sk}:")

    def gatewait(self):
        if not self.gate:
            return
        top, done, sk = self.lab("L_gate"), self.lab("L_gated"), self.lab("L_gskip")
        self(f"""s_cmp_lg_u32 s{sWV}, 0
        s_cbranch_scc1 {sk}
        s_and_b32 s{sT0}, s2, 63
        s_lshl_b32 s{sT0}, s{sT0}, 8
        s_add_u32 s{sT0}, s{sT0}, s{sBLK}
        s_add_u32 s{sT0}, s{sT0}, {B_DN + 2048}
        v_mov_b32 v37, 0
        s_mov_b32 s{sCNT}, {SPIN}
        s_mov_b64 exec, 1
        {top}:
        buffer_load_dword v36, v37, {sreg(sWS)}, s{sT0} offen sc1
        s_waitcnt vmcnt(0)
        v_cmp_eq_u32 vcc, 7, v36
        s_cbranch_vccnz {done}
        s_sleep 2
        s_sub_u32 s{sCNT}, s{sCNT}, 1
        s_cbranch_scc0 {top}
        {done}:
        s_mov_b64 exec, -1
        {sk}:
        s_barrier""")

    def dma_tiles(self, srd, vaddr, tiles):
        for lo, imm in tiles:
            self(f"""s_add_u32 m0, s{sWB}, {lo}
            s_add_u32 s{sT2}, s{sT1}, {imm}
            buffer_load_dwordx4 v{vaddr}, {sreg(srd)}, s{sT2} offen lds""")

    def by_nl(self, fn):
        l2, le = self.lab("L_nl2"), self.lab("L_nle")
        self(f"s_cmp_ge_u32 s{sWV}, 2\ns_cbranch_scc1 {l2}")
        fn(3)
        self(f"s_branch {le}\n{l2}:")
        fn(2)
        self(f"{le}:")

    def ld_wq(self):
        T = vT
        self(f"""v_lshrrev_b32 v{T}, 3, v{vLANE}
        v_mul_u32_u24 v{T}, {16*12288}, v{T}
        v_and_b32 v{T+1}, 7, v{vLANE}
        v_lshl_add_u32 v{T+1}, v{T+1}, 4, v{T}
        v_add_u32 v{T}, v{T}, v{T+1}
        s_lshl_b32 s{sT1}, s{sS}, 2
        s_add_u32 s{sT1}, s{sT1}, s{sWV}
        s_mul_i32 s{sT1}, s{sT1}, 12288
        s_mul_i32 s{sT2}, s{sHQ}, 384
        s_add_u32 s{sT1}, s{sT1}, s{sT2}
        s_add_u32 s{sT2}, s{sT1}, {256*12288}""")
        for i in range(2):
            for j, r in enumerate(buf(i)):
                self(f"buffer_load_dwordx4 {r}, v{T}, {sreg(sWQ)}, s{sT1+i} offen offset:{128*j}{self.wpol}")
        sk = self.lab("L_wq2")
        self(f"""s_cmp_ge_u32 s{sWV}, 2
        s_cbranch_scc1 {sk}
        s_mul_i32 s{sT2}, s{sS}, {2*12288}
        s_sub_u32 s{sT1}, s{sT1}, s{sT2}
        s_add_u32 s{sT1}, s{sT1}, {512*12288}""")
        for j, r in enumerate(buf(2)):
            self(f"buffer_load_dwordx4 {r}, v{T+1}, {sreg(sWQ)}, s{sT1} offen offset:{128*j}{self.wpol}")
        self(f"{sk}:")
        self.op("w", 6)

    def ld_wo(self, j):
        self(f"""v_lshrrev_b32 v38, 3, v{vLANE}
        v_mul_u32_u24 v38, 1280, v38
        v_and_b32 v39, 7, v{vLANE}
        v_lshl_add_u32 v38, v39, 4, v38
        s_mul_i32 s{sT1}, s{sHQ}, 24
        s_add_u32 s{sT1}, s{sT1}, s{sS}
        s_mul_i32 s{sT1}, s{sT1}, {8*1280}
        s_lshl_b32 s{sT2}, s{sWV}, 7
        s_add_u32 s{sT1}, s{sT1}, s{sT2}
        s_add_u32 s{sT1}, s{sT1}, {j*64*1280}""")
        for i in range(3):
            if i == 2:
                self(f"s_cmp_lt_u32 s{sWV}, 2\ns_cselect_b64 exec, -1, 1")
            self(f"buffer_load_dwordx4 {WOG[j][i]}, v38, {sreg(sWO)}, s{sT1} offen offset:{512*i}{self.wpol}")
        self("s_mov_b64 exec, -1")
        self.op("w", 3)

    def dma_ffn(self):
        T = vT
        self(f"""v_mul_u32_u24 v{T}, {4*3072}, v{vLANE}
        v_mul_u32_u24 v{T+1}, {2*3072}, v{vLANE}
        s_mul_i32 s{sT1}, s{sWV}, 3072
        s_lshl_b32 s{sT2}, s{sT3}, 4
        s_add_u32 s{sT1}, s{sT1}, s{sT2}""")
        self.dma_tiles(sW1, T, [(i*1024, i*256*3072) for i in range(2)])
        sk = self.lab("L_w12")
        self(f"s_cmp_ge_u32 s{sWV}, 2\ns_cbranch_scc1 {sk}")
        self.dma_tiles(sW1, T + 1, [(2048, 512*3072)])
        self(f"{sk}:")
        self(f"""v_lshrrev_b32 v{T}, 3, v{vLANE}
        v_mul_u32_u24 v{T}, 1280, v{T}
        v_and_b32 v{T+1}, 7, v{vLANE}
        v_lshl_add_u32 v{T}, v{T+1}, 4, v{T}
        s_mul_i32 s{sT1}, s{sT3}, {8*1280}
        s_lshl_b32 s{sT2}, s{sWV}, 7
        s_add_u32 s{sT1}, s{sT1}, s{sT2}""")
        self.by_nl(lambda nl: self.dma_tiles(sW2, T, [((nl+i)*1024, i*512) for i in range(nl)]))

    def ffn_index(self):
        self(f"""s_and_b32 s{sT3}, s2, 7
        s_mul_i32 s{sT3}, s{sT3}, 24
        s_lshr_b32 s{sT2}, s2, 3
        s_add_u32 s{sT3}, s{sT3}, s{sT2}""")

    def ln(self):
        S1, S2, T = 18, 19, 32
        self(f"v_readfirstlane_b32 s{sT0}, v8\ns_nop 1")
        self(f"v_subrev_f32 v{S1}, s{sT0}, v8\nv_mul_f32 v{S2}, v{S1}, v{S1}")
        for i in range(1, 10):
            self(f"v_subrev_f32 v{T+(i&1)}, s{sT0}, v{8+i}\nv_add_f32 v{S1}, v{S1}, v{T+(i&1)}\nv_fmac_f32 v{S2}, v{T+(i&1)}, v{T+(i&1)}")
        self("s_nop 0")
        for d in ("quad_perm:[1,0,3,2] row_mask:0xf", "quad_perm:[2,3,0,1] row_mask:0xf", "row_half_mirror row_mask:0xf",
                  "row_mirror row_mask:0xf", "row_bcast:15 row_mask:0xa", "row_bcast:31 row_mask:0xc"):
            self(f"""s_nop 0
            v_add_f32_dpp v{S1}, v{S1}, v{S1} {d} bank_mask:0xf
            v_add_f32_dpp v{S2}, v{S2}, v{S2} {d} bank_mask:0xf""")
        self(f"""s_nop 0
        v_readlane_b32 s{sT1}, v{S1}, 63
        v_readlane_b32 s{sT2}, v{S2}, 63
        v_mov_b32 v{T}, {INV640:#x}
        s_nop 0
        v_mul_f32 v{S1}, s{sT1}, v{T}
        v_mul_f32 v{S2}, s{sT2}, v{T}
        v_fma_f32 v{S2}, -v{S1}, v{S1}, v{S2}
        v_max_f32 v{S2}, 0, v{S2}
        v_add_f32 v{S1}, s{sT0}, v{S1}""")
        self.bf16r(S1, S1)
        self.bf16r(S2, S2)
        self(f"v_add_f32 v{S2}, {EPS:#x}, v{S2}")
        self.bf16r(S2, S2)
        self(f"v_sqrt_f32 v{S2}, v{S2}\ns_nop 0")
        self.bf16r(S2, S2)
        self(f"v_rcp_f32 v{S2}, v{S2}")
        for i in range(3):
            self(f"v_sub_f32 v{36+i}, v{36+i}, v{S1}")
            self.bf16r(36 + i, 36 + i)
        for i in range(3):
            self(f"v_mul_f32 v{36+i}, v{36+i}, v{S2}\nv_cvt_pk_bf16_f32 v{36+i}, v{36+i}, v{36+i}")

    def x_addr(self, mode):
        if mode == "ffn":
            self(f"v_mov_b32 v32, v{vL16}\nv_lshlrev_b32 v33, 3, v{vLANE}")
        else:
            self(f"""v_add_u32 v32, s{sS}, v{vLANE}
            v_and_b32 v32, 7, v32
            v_and_or_b32 v32, v{vLANE}, 56, v32
            v_lshlrev_b32 v33, 3, v32
            v_lshlrev_b32 v32, 4, v32""")

    def x_pick(self, mode):
        self(f"""s_bitcmp1_b32 s{sWV}, 0
        s_cselect_b64 vcc, -1, 0
        v_cndmask_b32 v36, v8, v9, vcc
        v_cndmask_b32 v34, v10, v11, vcc
        v_cndmask_b32 v37, v12, v13, vcc
        v_cndmask_b32 v35, v14, v15, vcc
        v_cndmask_b32 v38, v16, v17, vcc
        s_bitcmp1_b32 s{sWV}, 1
        s_cselect_b64 vcc, -1, 0
        v_cndmask_b32 v36, v36, v34, vcc
        v_cndmask_b32 v37, v37, v35, vcc""")
        if mode == "q":
            self("s_nop 0")
            for r in (38, 36, 37):
                self(f"v_mov_b32_dpp v{r}, v{r} row_newbcast:0 row_mask:0xf bank_mask:0x3")
            for r in (38, 36, 37):
                self(f"v_mov_b32_dpp v{r}, v{r} row_newbcast:8 row_mask:0xf bank_mask:0xc")

    def x_gather(self, xoff, mode):
        self.x_addr(mode)
        self(f"""s_and_b32 s{sT1}, s2, {self.xrep-1}
        s_mul_i32 s{sT1}, s{sT1}, 2560
        s_add_u32 s{sT1}, s{sT1}, s{sBLK}
        s_add_u32 s{sT1}, s{sT1}, {xoff}""")
        ws = sreg(sWS)
        sk, j = self.lab("L_xskip"), self.lab("L_xjoin")
        if self.xw == 1:
            self(f"""v_add_u32 v34, {L_XS}, v{vL16}
            v_lshlrev_b32 v35, 3, v{vLANE}
            v_add_u32 v35, {L_XS + 2048}, v35
            s_cmp_lg_u32 s{sWV}, 0
            s_cbranch_scc1 {sk}""")
        for k in range(3):
            self(f"s_mov_b64 {sreg(MASKS[k], 2)}, -1")
        self.poll_masked([(f"buffer_load_dwordx4 v[8:11], v32, {ws}, s{sT1} offen sc1", [8, 9, 10, 11]),
                          (f"buffer_load_dwordx4 v[12:15], v32, {ws}, s{sT1} offen offset:1024 sc1", [12, 13, 14, 15]),
                          (f"buffer_load_dwordx2 v[16:17], v33, {ws}, s{sT1} offen offset:2048 sc1", [16, 17])], 36)
        if self.xw == 1:
            self(f"""ds_write_b128 v34, v[8:11]
            ds_write_b128 v34, v[12:15] offset:1024
            ds_write_b64 v35, v[16:17]
            s_waitcnt lgkmcnt(0)
            s_barrier
            s_branch {j}
            {sk}:
            s_waitcnt vmcnt(0)
            s_barrier
            ds_read_b128 v[8:11], v34
            ds_read_b128 v[12:15], v34 offset:1024
            ds_read_b64 v[16:17], v35
            s_waitcnt lgkmcnt(0)
            {j}:""")
        self.x_pick(mode)

    def y_addr(self, yoff, P, sprod):
        P128 = P * 128
        self(f"""v_bfe_u32 v39, v{vLANE}, 2, 1
        v_lshrrev_b32 v35, 5, v{vLANE}
        v_lshl_add_u32 v39, v35, 3, v39
        v_mul_u32_u24 v39, {P128}, v39
        v_and_b32 v35, 3, v{vLANE}
        v_lshl_add_u32 v39, v35, 5, v39
        v_and_b32 v35, 16, v{vLANE}
        v_add_u32 v39, v39, v35
        s_mul_i32 s{sT4}, s{sWV}, {2*P128}
        s_lshl_b32 s{sLOOP}, s{sprod}, 7
        s_add_u32 s{sT4}, s{sT4}, s{sLOOP}
        s_add_u32 s{sT4}, s{sT4}, s{sBLK}
        s_add_u32 s{sT4}, s{sT4}, {yoff}
        s_add_u32 s{sLOOP}, s{sT4}, {16*P128}""")

    def publish_y(self, nl):
        self("s_nop 7")
        self.parity(nl)
        self(f"""s_mov_b32 exec_lo, 0x00ff00ff
        s_mov_b32 exec_hi, 0x00ff00ff
        buffer_store_dwordx4 {vr(vACC)}, v39, {sreg(sWS)}, s{sT4} offen sc1""")
        if nl == 3:
            self(f"""s_mov_b32 exec_hi, 0
            buffer_store_dwordx4 {vr(vACC+8)}, v39, {sreg(sWS)}, s{sLOOP} offen sc1""")
        self("s_mov_b64 exec, -1")

    def pkadd(self, d, a, n=4):
        for r in range(0, n, 2):
            self(f"v_pk_add_f32 v[{d+r}:{d+r+1}], v[{d+r}:{d+r+1}], v[{a+r}:{a+r+1}]")

    def reducer(self, yoff, P, final_possible, xoff, T):
        nld = P // 32
        self(f"""s_sub_u32 s{sT3}, s2, {RED0}
        s_mul_i32 s{sT1}, s{sT3}, {P*128}
        s_mul_i32 s{sT0}, s{sWV}, {P*32}
        s_add_u32 s{sT1}, s{sT1}, s{sT0}
        s_add_u32 s{sT1}, s{sT1}, s{sBLK}
        s_add_u32 s{sT1}, s{sT1}, {yoff}
        s_add_u32 s{sT2}, s{sT1}, 4096""")
        self(f"""v_and_b32 v{T+3}, 112, v{vL16}
        v_lshrrev_b32 v{T}, 5, v{vLANE}
        v_lshl_add_u32 v{T+2}, v{T}, 2, v{T+3}
        v_and_b32 v{T}, 16, v{vLANE}
        v_lshrrev_b32 v{T}, 1, v{T}
        s_lshl_b32 s{sT0}, s{sWV}, 7
        s_add_u32 s{sT0}, s{sT0}, {L_RED}
        v_add3_u32 v{T+2}, v{T+2}, v{T}, s{sT0}
        v_lshrrev_b32 v{T+4}, 3, v{vLANE}
        v_mul_u32_u24 v{T+4}, 2560, v{T+4}
        v_add_u32 v{T+4}, v{T+4}, v{T+3}
        v_add_u32 v{T+3}, {L_RED}, v{T+3}
        s_lshl_b32 s{sT0}, s{sT3}, 7
        s_add_u32 s{sT0}, s{sT0}, s{sBLK}
        s_add_u32 s{sT0}, s{sT0}, {xoff}""")
        for k in range(nld):
            self(f"s_mov_b64 {sreg(MASKS[k], 2)}, -1")
        self.poll_masked([(f"buffer_load_dwordx4 {vr(8+4*k)}, v{vL16}, {sreg(sWS)}, s{sT1 + k//4} offen offset:{1024*(k%4)} sc1",
                           list(range(8+4*k, 12+4*k))) for k in range(nld)], T)
        n = nld
        while n > 1:
            h = (n + 1) // 2
            self.pkadd(8, 8 + 4 * h, 4 * (n - h))
            n = h
        self(f"""s_nop 1
        v_permlane32_swap_b32 v8, v9
        v_permlane32_swap_b32 v10, v11
        s_nop 0
        v_add_f32 v8, v8, v9
        v_add_f32 v10, v10, v11
        s_nop 1
        v_permlane16_swap_b32 v8, v10
        s_nop 1
        v_add_f32 v8, v8, v10
        s_nop 1
        v_add_f32_dpp v8, v8, v8 row_ror:8 row_mask:0xf bank_mask:0xf
        ds_write_b32 v{T+2}, v8
        ds_read_b128 v[24:27], v{T+3} offset:{L_XK-L_RED}
        s_waitcnt lgkmcnt(0)
        s_barrier""")
        done = self.lab("L_reddone")
        self(f"""s_cmp_lg_u32 s{sWV}, 0
        s_cbranch_scc1 {done}
        ds_read_b128 v[8:11], v{T+3}
        ds_read_b128 v[12:15], v{T+3} offset:128
        ds_read_b128 v[16:19], v{T+3} offset:256
        ds_read_b128 v[20:23], v{T+3} offset:384
        s_waitcnt lgkmcnt(0)""")
        self.pkadd(8, 16, 8)
        self.pkadd(8, 12, 4)
        for r in range(4):
            self.bf16r(8 + r, 8 + r)
        self.pkadd(8, 24, 4)
        if final_possible:
            nf = self.lab("L_notfinal")
            self(f"""s_cmp_eq_u32 s{sPASS}, 0
            s_cbranch_scc1 {nf}
            v_cvt_pk_bf16_f32 v12, v8, v9
            v_cvt_pk_bf16_f32 v13, v10, v11
            v_lshlrev_b32 v{T+1}, 3, v{vLANE}
            s_lshl_b32 s{sT0}, s{sT3}, 6
            s_mov_b64 exec, 0xff
            buffer_store_dwordx2 v[12:13], v{T+1}, {sreg(sOUT)}, s{sT0} offen
            s_mov_b64 exec, -1
            s_branch {done}
            {nf}:""")
        for r in range(4):
            self.bf16r(8 + r, 8 + r)
        self(f"""buffer_store_dwordx4 v[8:11], v{T+4}, {sreg(sWS)}, s{sT0} offen sc1
        ds_write_b128 v{T+3}, v[8:11] offset:{L_XK-L_RED}
        s_waitcnt lgkmcnt(0)
        {done}:""")

    def q_prep(self):
        self(f"""s_mul_i32 s{sT0}, s{sWV}, 768
        s_add_u32 s{sT0}, s{sT0}, {L_PART}
        v_lshrrev_b32 v39, 5, v{vLANE}
        v_lshl_add_u32 v39, v39, 8, s{sT0}
        v_and_b32 v35, 7, v{vLANE}
        v_lshl_add_u32 v39, v35, 5, v39
        v_and_b32 v35, 16, v{vLANE}
        v_add_u32 v39, v39, v35""")

    def q_partial(self):
        g = self
        g.ln()
        g.mkA(32, 36)
        g.mkA(24, 37)
        for j in range(3):
            g(f"v_mfma_f32_16x16x32_bf16 {vr(vACC+4*j)}, v[32:35], {buf(0)[j]}, 0")
        g.mkA(28, 38)
        for j in range(3):
            g(f"v_mfma_f32_16x16x32_bf16 {vr(vACC+4*j)}, v[24:27], {buf(1)[j]}, {vr(vACC+4*j)}")
        q2 = g.lab("L_q2")
        g(f"s_cmp_ge_u32 s{sWV}, 2\ns_cbranch_scc1 {q2}")
        for j in range(3):
            g(f"v_mfma_f32_16x16x32_bf16 {vr(vACC+4*j)}, v[28:31], {buf(2)[j]}, {vr(vACC+4*j)}")
        g(f"{q2}:\ns_nop 7")
        g.parity(3)
        g(f"""s_mov_b32 exec_lo, 0x00ff00ff
        s_mov_b32 exec_hi, 0x00ff00ff
        ds_write_b128 v39, {vr(vACC)}
        s_mov_b32 exec_hi, 0
        ds_write_b128 v39, {vr(vACC+8)} offset:512
        s_mov_b64 exec, -1
        v_add_u32 v32, {L_PART}, v{vL16}
        s_waitcnt lgkmcnt(0)
        s_barrier""")

    def q_publish(self, qp):
        g = self
        for k in range(4):
            g(f"ds_read_b128 {vr(8+4*k)}, v32 offset:{768*k}")
        g(f"s_mul_i32 s{sT1}, s2, 768\ns_add_u32 s{sT1}, s{sT1}, {qp}\ns_mov_b32 exec_hi, 0xffff\ns_waitcnt lgkmcnt(0)")
        g.pkadd(8, 16, 8)
        g.pkadd(8, 12, 4)
        g(f"buffer_store_dwordx4 v[8:11], v{vL16}, {sreg(sWS)}, s{sT1} offen sc1\ns_mov_b64 exec, -1")

    def q_addr(self, qp):
        self(f"""s_mul_i32 s{sT3}, s{sSEGH}, 6144
        s_add_u32 s{sT3}, s{sT3}, {qp}
        s_add_u32 s{sLOOP}, s{sT3}, 3072""")

    def q_loads(self):
        return [(f"buffer_load_dwordx4 {vr(8+4*k)}, v{vL16}, {sreg(sWS)}, s{sT3 if k < 4 else sLOOP} offen offset:{(k%4)*768} sc1",
                 list(range(8+4*k, 12+4*k))) for k in range(8)]

    def q_sum(self):
        g = self
        g.pkadd(8, 24, 16)
        g(f"""s_and_b32 s{sT0}, s{sWV}, 1
        s_mul_i32 s{sT0}, s{sT0}, 384
        s_add_u32 s{sT0}, s{sT0}, {L_QB}
        v_lshl_add_u32 v24, v{vLANE}, 3, s{sT0}""")
        g.pkadd(8, 16, 8)
        g.pkadd(8, 12, 4)
        g("""v_cvt_pk_bf16_f32 v8, v8, v9
        v_cvt_pk_bf16_f32 v9, v10, v11
        ds_write_b64 v24, v[8:9]
        s_mov_b64 exec, -1""")

    def seg_a(self, ps):
        g = self
        pols = [(g.polx if (ps == 0 and g.xa[i] == "1") else g.pol) for i in range(3)]
        if ps == 0:
            g(f"s_mul_i32 s{sT0}, s{sWV}, 1536\ns_add_u32 s{sT0}, s{sT0}, {L_PART}")
        else:
            g(f"s_mul_i32 s{sT0}, s{sWV}, {NLDS*UB}\ns_add_u32 s{sT0}, s{sT0}, 16")
        sk = g.lab("L_no42")
        g(f"""s_lshl_b32 s{sT1}, s{sNB}, 4
        s_sub_u32 s{sT0}, s{sT0}, s{sT1}
        s_add_u32 s{sT0}, s{sT0}, {42*16}
        v_lshrrev_b32 v{vSC}, 3, v{vLANE}
        v_lshl_add_u32 v{vSC}, v{vSC}, 1, s{sT0}
        v_mov_b32 v{vMX}, 0xff800000
        v_mov_b32 v{vSV}, 0
        s_waitcnt lgkmcnt(0)
        s_cmp_lg_u32 s{sNB}, 42
        s_cbranch_scc1 {sk}""")
        g.qk_store(buf(kbuf(42)), 0)
        g(f"{sk}:")
        for k in range(43, NF):
            g.qk_store(buf(kbuf(k)), 16 * (k - 42))
        o0 = 16 * (NF - 42)
        nit = (NK - 2) // 3

        def kstep(i, kv):
            g("s_waitcnt vmcnt(3)")
            g.issue((i + 2) % 3, kv, sOFF, pols[(i + 2) % 3])
            g(f"s_add_u32 s{sOFF}, s{sOFF}, {STR}")
            g.qk_store(buf(i % 3), o0 + 16 * i)
        top = g.lab("L_kloop")
        g(f"s_mov_b32 s{sLOOP}, {nit}\n.p2align 6\n{top}:")
        for i in range(3):
            kstep(i, 0)
        g(f"""v_add_u32 v{vSC}, 48, v{vSC}
        s_sub_u32 s{sLOOP}, s{sLOOP}, 1
        s_cmp_lg_u32 s{sLOOP}, 0
        s_cbranch_scc1 {top}""")
        for i in range(NK - 3 * nit):
            if i == NK - 3 * nit - 2:
                g(f"s_mov_b32 s{sOFF}, s{sBA}")
            kstep(i, int(i >= NK - 3 * nit - 2))
        g.wavemax(vNEG, vMX)
        g(f"""s_lshl_b32 s{sT1}, s{sNB}, 4
        s_sub_u32 s{sT1}, {42*16 + 48*nit}, s{sT1}
        v_subrev_u32 v{vSC}, s{sT1}, v{vSC}""")
        top = g.lab("L_vloop")
        g(f"s_mov_b32 s{sLOOP}, 27\n.p2align 6\n{top}:")
        for i in range(3):
            g.p_stored(16 * i)
            g("s_waitcnt vmcnt(3)")
            g.issue((NK + i + 2) % 3, 1, sOFF, pols[(NK + i + 2) % 3])
            g(f"s_add_u32 s{sOFF}, s{sOFF}, {STR}")
            g.pv((NK + i) % 3)
        g(f"""v_add_u32 v{vSC}, 48, v{vSC}
        s_sub_u32 s{sLOOP}, s{sLOOP}, 1
        s_cmp_lg_u32 s{sLOOP}, 0
        s_cbranch_scc1 {top}""")

    def build(self):
        T = vT
        g = self
        g("s_cmp_ge_u32 s2, 256\ns_cbranch_scc1 L_end")
        g.stamp(0)
        g(f"""s_load_dwordx2 s[{sK}:{sK+1}], s[0:1], 8
        s_load_dwordx2 s[{sX}:{sX+1}], s[0:1], 0
        s_load_dwordx2 s[{sV}:{sV+1}], s[0:1], 16
        s_load_dwordx2 s[{sWQ}:{sWQ+1}], s[0:1], 24
        s_load_dwordx2 s[{sWO}:{sWO+1}], s[0:1], 32
        s_load_dwordx2 s[{sW1}:{sW1+1}], s[0:1], 48
        s_load_dwordx2 s[{sW2}:{sW2+1}], s[0:1], 56
        s_load_dwordx2 s[{sOUT}:{sOUT+1}], s[0:1], 64
        s_load_dwordx2 s[{sDBG}:{sDBG+1}], s[0:1], 72
        s_load_dwordx2 s[{sWS}:{sWS+1}], s[0:1], 80
        v_lshrrev_b32 v1, 6, v0
        v_and_b32 v{vLANE}, 63, v0
        v_readfirstlane_b32 s{sWV}, v1""")
        for s, n in ((sX, 1280), (sK, KVB), (sV, KVB), (sWQ, 640*6144*2), (sWO, 6144*640*2), (sW1, 640*1536*2),
                     (sW2, 1536*640*2), (sOUT, 1280), (sDBG, 256), (sWS, WS_REC)):
            g(f"s_mov_b32 s{s+2}, {n}\ns_mov_b32 s{s+3}, 0x20000")
        g(f"""s_lshr_b32 s{sHQ}, s2, 3
        s_and_b32 s{sS}, s2, 7
        s_lshr_b32 s{sT0}, s2, 5
        s_lshl_b32 s{sT0}, s{sT0}, 3
        s_add_u32 s{sT0}, s{sT0}, s{sS}
        s_and_b32 s{sT1}, s{sHQ}, 3
        s_mul_i32 s{sT2}, s{sT0}, 43
        s_lshr_b32 s{sT3}, s{sT2}, 8
        s_lshr_b32 s{sT2}, s{sT2}, 7
        s_mul_i32 s{sT4}, s{sT2}, 3
        s_sub_u32 s{sT4}, s{sT0}, s{sT4}""")
        g(f"""s_cmp_eq_u32 s{sT4}, 0
        s_cselect_b32 s{sNB}, 42, 43
        s_mul_i32 s{sBA}, s{sT4}, 85
        s_add_u32 s{sBA}, s{sBA}, s{sNB}
        s_sub_u32 s{sBA}, s{sBA}, 42
        s_lshl_b32 s{sOFF}, s{sT2}, 8
        s_add_u32 s{sBA}, s{sBA}, s{sOFF}
        s_lshl_b32 s{sT4}, s{sT4}, 2
        s_add_u32 s{sT4}, s{sT4}, s{sT1}""")
        g(f"""s_mul_i32 s{sLOOP}, s{sT3}, 6
        s_sub_u32 s{sLOOP}, s{sT0}, s{sLOOP}
        s_mul_i32 s{sBB}, s{sLOOP}, 43
        s_cmp_gt_u32 s{sLOOP}, 0
        s_subb_u32 s{sBB}, s{sBB}, 0
        s_cmp_gt_u32 s{sLOOP}, 3
        s_subb_u32 s{sBB}, s{sBB}, 0
        s_add_u32 s{sT3}, s{sT3}, 22
        s_cmp_ge_u32 s{sT0}, 60
        s_cselect_b32 s{sT3}, 21, s{sT3}
        s_cselect_b32 s{sOFF}, 86, 0
        s_addc_u32 s{sLOOP}, s{sLOOP}, 0
        s_add_u32 s{sBB}, s{sBB}, s{sOFF}
        s_lshl_b32 s{sOFF}, s{sT3}, 8
        s_add_u32 s{sBB}, s{sBB}, s{sOFF}
        s_lshl_b32 s{sLOOP}, s{sLOOP}, 2
        s_add_u32 s{sLOOP}, s{sLOOP}, s{sT1}
        s_bitcmp1_b32 s{sWV}, 0
        s_cselect_b32 s{sSEGH}, s{sT3}, s{sT2}
        s_cselect_b32 s{sSEGP}, s{sLOOP}, s{sT4}
        s_lshl_b32 s{sT1}, s{sT1}, 2
        s_add_u32 s{sT1}, s{sT1}, s{sWV}
        s_lshl_b32 s{sBA}, s{sBA}, 4
        s_lshl_b32 s{sBB}, s{sBB}, 4
        s_add_u32 s{sBA}, s{sBA}, s{sT1}
        s_add_u32 s{sBB}, s{sBB}, s{sT1}
        s_mul_i32 s{sBA}, s{sBA}, {UB}
        s_mul_i32 s{sBB}, s{sBB}, {UB}
        s_mov_b32 s{sOFF}, s{sBB}""")
        g(f"""v_bfe_u32 v{vKO}, v{vLANE}, 1, 3
        v_mul_u32_u24 v{vKO}, 384, v{vKO}
        v_and_b32 v{T}, 1, v{vLANE}
        v_lshl_add_u32 v{vKO}, v{T}, 6, v{vKO}
        v_and_b32 v{T}, 48, v{vLANE}
        v_add_u32 v{vKO}, v{vKO}, v{T}
        s_waitcnt lgkmcnt(0)""")

        def keep(k):
            if k in (42, 43):
                g(f"s_cmp_eq_u32 s{sNB}, {k}\ns_cselect_b32 s{sOFF}, s{sBA}, s{sOFF}")
            if kbuf(k) is None:
                for j in range(3):
                    g(f"""s_add_u32 m0, s{sT4}, {(k-LDS0)*UB + j*1024}
                    s_add_u32 s{sT2}, s{sOFF}, {128*j}
                    buffer_load_dwordx4 v{vKO}, {sreg(sK)}, s{sT2} offen{g.pol} lds""")
                g.op(k, 3)
            else:
                g.issue(kbuf(k), 0, sOFF, g.pol, k)
            g(f"s_add_u32 s{sOFF}, s{sOFF}, {STR}")

        keep(0)
        keep(1)
        g(f"""v_lshlrev_b32 v{vL16}, 4, v{vLANE}
        v_lshrrev_b32 v{vVO}, 3, v{vLANE}
        v_mul_u32_u24 v{vVO}, 384, v{vVO}
        v_and_b32 v{T}, 7, v{vLANE}
        v_lshl_add_u32 v{vVO}, v{T}, 4, v{vVO}
        v_and_b32 v{T+1}, 1, v{vLANE}
        v_lshlrev_b32 v{T+1}, 4, v{T+1}
        v_mov_b32 v{T+2}, 0xffff
        v_lshlrev_b32 v{T+1}, v{T+1}, v{T+2}
        v_lshrrev_b32 v{T}, 1, v{T}""")
        for r in range(4):
            g(f"v_cmp_eq_u32 vcc, {r}, v{T}\ns_nop 1\nv_cndmask_b32 v{vMK+r}, 0, v{T+1}, vcc")
        g(f"""s_mov_b32 s{sPASS}, 0
        s_mov_b32 s{sBLK}, {W_B0}
        s_mul_i32 s{sWB}, s{sWV}, 6144
        s_cmp_eq_u32 s{sWV}, 3
        s_cselect_b32 s{sWB}, 16384, s{sWB}
        s_add_u32 s{sWB}, s{sWB}, {L_W}
        s_mul_i32 s{sT4}, s{sWV}, {NLDS*UB}""")
        g.x_addr("q")
        g(f"""v_lshrrev_b32 v32, 2, v32
        buffer_load_dwordx2 v[20:21], v33, {sreg(sX)}, 0 offen
        buffer_load_dwordx2 v[22:23], v33, {sreg(sX)}, 0 offen offset:512
        buffer_load_dword v24, v32, {sreg(sX)}, 0 offen offset:1024
        s_sub_u32 s{sT0}, s2, {RED0}
        s_lshl_b32 s{sT0}, s{sT0}, 6
        v_lshl_add_u32 v35, v{vLANE}, 1, s{sT0}
        buffer_load_ushort v39, v35, {sreg(sX)}, 0 offen""")
        g.op("x", 4)
        g.ld_wq()
        g(f"""v_mov_b32 v8, -1
        v_mov_b32 v9, -1
        v_mov_b32 v10, -1
        v_mov_b32 v11, -1
        s_lshl_b32 s{sT0}, s2, 2
        s_add_u32 s{sT0}, s{sT0}, s{sWV}
        s_mul_i32 s{sT1}, s{sT0}, 192
        s_mul_i32 s{sT0}, s{sT0}, {NCLR*1024}
        s_add_u32 s{sT0}, s{sT0}, {W_B0}
        s_mov_b64 exec, 0xfff
        buffer_store_dwordx4 v[8:11], v{vL16}, {sreg(sWS)}, s{sT1} offen sc1
        s_mov_b64 exec, -1""")
        for j in range(NCLR):
            g(f"buffer_store_dwordx4 v[8:11], v{vL16}, {sreg(sWS)}, s{sT0} offen offset:{1024*j} sc1")
        g.op("clr", 1 + NCLR)
        KQ1, KB, KG = 4, 16, 19
        for k in range(2, NF):
            g.wait(k - 2)
            keep(k)
            if k == KQ1:
                assert "clr" not in g.q and "w" not in g.q
                for i in range(5):
                    g(f"v_lshlrev_b32 v{8+2*i}, 16, v{20+i}\nv_and_b32 v{9+2*i}, 0xffff0000, v{20+i}")
                g.x_pick("q")
                g(f"""v_lshlrev_b32 v39, 16, v39
                v_lshlrev_b32 v35, 2, v{vLANE}
                v_add_u32 v35, {L_XK}, v35
                s_mov_b32 exec_hi, 0
                ds_write_b32 v35, v39
                s_mov_b64 exec, -1""")
                g.q_prep()
                g.q_partial()
                g.stamp(9)
            if k == KQ1 + 1:
                sk = g.lab("L_nopub")
                g(f"""s_cmp_lg_u32 s{sWV}, 0
                s_cbranch_scc1 {sk}
                s_mov_b32 s{sT0}, 1
                s_lshl_b32 s{sT1}, s{sHQ}, 3
                s_atomic_add s{sT0}, s[{sDBG}:{sDBG+1}], s{sT1}""")
                g.q_publish(W_QP0)
                g(f"{sk}:")
            if k == KQ1 + 3:
                sk = g.lab("L_noffn")
                g(f"s_cmp_ge_u32 s2, {NFFN}\ns_cbranch_scc1 {sk}")
                g.ffn_index()
                g.dma_ffn()
                g(f"{sk}:")
            ldb = f"buffer_load_dword v32, v33, {sreg(sDBG)}, 0 offen sc1"
            if k == KB:
                g(f"v_and_b32 v33, 31, v{vLANE}\nv_lshlrev_b32 v33, 3, v33\n{ldb}")
                g.op("bar")
            if k == KG:
                assert "bar" not in g.q
                top, chk, done = g.lab("L_bar"), g.lab("L_barc"), g.lab("L_bard")
                g(f"""s_mov_b32 s{sCNT}, {SPIN}
                s_branch {chk}
                {top}:
                {ldb}
                s_waitcnt vmcnt(0)
                {chk}:
                v_cmp_gt_u32 vcc, 8, v32
                s_cbranch_vccz {done}
                s_sub_u32 s{sCNT}, s{sCNT}, 1
                s_cbranch_scc0 {top}
                {done}:""")
                g.q_addr(W_QP0)
                g("s_mov_b32 exec_hi, 0xffff")
                for ld, _ in g.q_loads():
                    g(ld)
                g("s_mov_b64 exec, -1")
                g.op("q", 8)
            if k == KG + 3:
                assert "q" not in g.q
                g("s_mov_b32 exec_hi, 0xffff")
                g.poll([ld for ld, _ in g.q_loads()], range(8, 40), 40, pre=True)
                g.q_sum()
        for i in range(2):
            g.wait(NF - 2 + i)
            g.issue(i, 0, sOFF, g.pol, "r")
            g(f"s_add_u32 s{sOFF}, s{sOFF}, {STR}")
        g("s_waitcnt lgkmcnt(0)\ns_barrier")
        g.load_q(0)
        g.init_softmax()
        g.stamp(10)

        g.seg_a(0)
        pb = lambda k: g.polx if (g.xb[k % 3] == "1" or k in g.l2) else g.pol
        R = lambda u: (NK + u) % 3
        for u in (81, 82, 83, 84):
            if u == 83:
                g(f"""s_add_u32 s{sT0}, s{sBB}, {42*STR}
                s_cmp_eq_u32 s{sNB}, 43
                s_cselect_b32 s{sOFF}, s{sT0}, s{sOFF}""")
            if u == 84:
                g(f"s_add_u32 s{sOFF}, s{sBB}, {41*STR}")
            g.p_stored(16 * (u - 81))
            g("s_waitcnt vmcnt(3)")
            g.issue(R(u + 2), 1, sOFF, g.pol)
            g(f"s_add_u32 s{sOFF}, s{sOFF}, {STR}")
            g.pv(R(u))
        g(f"""s_add_u32 s{sOFF}, s{sBB}, {40*STR}
        s_mul_i32 s{sT0}, s{sWV}, {NLDS*UB}
        v_add_u32 v{vLA}, s{sT0}, v{vL16}
        s_mov_b32 s{sT4}, 0
        s_cmp_eq_u32 s{sNB}, 43
        s_cbranch_scc1 L_p1b42""")
        g.p_stored(64)
        g("s_waitcnt vmcnt(3)")
        g.issue(vbslot(40), 1, sOFF, pb(40))
        g.pv(R(85))
        g(f"s_call_b64 s[{sRT2}:{sRT2+1}], L_switch\ns_branch L_p1b41\nL_p1b42:")
        g(f"s_call_b64 s[{sRT2}:{sRT2+1}], L_switch")
        g.qk_online(42)
        g("s_waitcnt vmcnt(3)")
        g.issue(vbslot(40), 1, sOFF, pb(40))
        g.pv(vbslot(42))
        g("L_p1b41:")
        g.q = [41] * 3 + [40] * 3
        for k in range(41, -1, -1):
            g.qk_online(k)
            if k == 0:
                g.ld_wo(1)
                g.ld_wo(2)
            g.wait(k)
            if k == 3:
                g.arrive(0)
            if k == 1:
                g.arrive(1)
                g.ld_wo(0)
            if k >= 2:
                g(f"s_sub_u32 s{sOFF}, s{sOFF}, {STR}")
                g.issue(vbslot(k - 2), 1, sOFF, pb(k - 2), k - 2)
            g.pv(vbslot(k))
        g(f"s_mov_b32 s{sT4}, 1\ns_branch L_passend")

        for i in range(self.pad):
            g("s_nop 0")
        g("L_switch:")
        g.stamp(11)
        g.flush()
        g(f"""v_and_b32 v{vT}, 1, v{vLANE}
        v_lshlrev_b32 v{vT}, 6, v{vT}
        v_and_b32 v{vT+1}, 48, v{vLANE}
        s_xor_b32 s{sT0}, s{sT4}, 1
        s_mul_i32 s{sT0}, s{sT0}, 384
        s_add_u32 s{sT0}, s{sT0}, {L_QB}
        v_add3_u32 v{vT}, v{vT}, v{vT+1}, s{sT0}""")
        for j in range(3):
            g(f"ds_read_b128 {ar(aQ+4*j)}, v{vT} offset:{128*j}")
        g("s_waitcnt lgkmcnt(0)")
        g.init_softmax()
        g(f"s_setpc_b64 s[{sRT2}:{sRT2+1}]")
        g.rescale_sub()

        g("L_pass2:")
        order = list(g.order2) if g.order2 else []
        order += [k for k in range(42) if k not in order]
        assert order[-2:] == [40, 41]
        where = {order[i]: i for i in range(3)}
        g.q = [k for k in order[:3] for _ in range(3)]
        free = []
        nxt = 3

        def fill(depth):
            nonlocal nxt
            while nxt < 42 and free and len([t for t in set(g.q) if isinstance(t, int)]) < depth:
                k = order[nxt]
                b = max(free)
                free.remove(b)
                where[k] = b
                g(f"s_add_u32 s{sOFF}, s{sBB}, {k*STR}")
                g.issue(b, 1, sOFF, g.pol, k)
                nxt += 1

        for i in range(40):
            k = order[i]
            depth = g.burst[min(i, len(g.burst) - 1)] if i < 36 else 2
            g.qk_online(k)
            if kbuf(k) is not None:
                free.append(kbuf(k))
            g.wait(k)
            fill(depth)
            g("s_nop 0")
            g.pv(where[k])
            free.append(where[k])
            if i < 3:
                fill(depth)
            if i == 14:
                g.dump_stamps(2, 0)
        assert nxt == 42 and g.q == [40] * 3 + [41] * 3 and where[40] > 2 and where[41] > 2
        g(f"""s_sub_u32 s{sT0}, {NF}, s{sNB}
        s_mul_i32 s{sT0}, s{sT0}, {STR}
        s_add_u32 s{sT3}, s{sBA}, s{sT0}
        s_mov_b32 s{sT4}, 1
        s_cmp_eq_u32 s{sNB}, 42
        s_cbranch_scc1 L_p2t42""")
        b42 = max(free)
        for tail in ([(40, b42, 1), (41, 0, 0), (42, 1, 0)], [(40, 0, 0), (41, 1, 0)]):
            for k, b, kv in tail:
                g.qk_online(k)
                g("s_waitcnt vmcnt(3)")
                if kv:
                    g(f"s_add_u32 s{sOFF}, s{sBB}, {42*STR}")
                    g.issue(b, 1, sOFF, g.pol)
                else:
                    g.issue(b, 0, sT3, g.pol)
                    g(f"s_add_u32 s{sT3}, s{sT3}, {STR}")
                g.pv(b42 if k == 42 else where[k])
            if len(tail) == 3:
                g("s_branch L_p2a\nL_p2t42:")
        g(f"L_p2a:\ns_mov_b32 s{sOFF}, s{sT3}\ns_call_b64 s[{sRT2}:{sRT2+1}], L_switch")
        g.seg_a(1)
        g.q = [81] * 3 + [82] * 3
        bufs = {81: R(81), 82: R(82), 83: 3, 84: 4, 85: 5}
        todo = {vbslot(2): 0, vbslot(1): 1}
        for u in (81, 82, 83):
            g.p_stored(16 * (u - 81))
            g.wait(u)
            if u == 81:
                g.arrive(0)
            if u == 83:
                g.arrive(1)
            if u < 83:
                g.issue(bufs[u + 2], 1, sOFF, g.pol, u + 2)
                g(f"s_add_u32 s{sOFF}, s{sOFF}, {STR}")
            else:
                sk = g.lab("L_no85")
                g(f"s_cmp_eq_u32 s{sNB}, 43\ns_cbranch_scc1 {sk}")
                g.issue(bufs[85], 1, sOFF, g.pol)
                g(f"{sk}:")
                q85 = len(g.q)
            if R(u - 1) in todo:
                g.ld_wo(todo.pop(R(u - 1)))
            else:
                g.ld_wo(2)
            g.pv(bufs[u])
        assert not todo
        n85 = len(g.q) - q85
        g.p_stored(48)
        g(f"s_cmp_eq_u32 s{sNB}, 43\ns_cbranch_scc1 L_p2e85")
        g.q = g.q[:q85] + [85] * 3 + g.q[q85:]
        g.wait(84)
        g.pv(bufs[84])
        g.p_stored(64)
        g(f"s_waitcnt vmcnt({n85})\ns_nop 0")
        g.pv(bufs[85])
        g("s_branch L_p2e\nL_p2e85:")
        g(f"s_waitcnt vmcnt({len(g.q) - 3})")
        g.pv(bufs[84])
        g(f"L_p2e:\ns_mov_b32 s{sT4}, 0")

        g("L_passend:")
        g.stamp(2)
        g.flush()
        g("s_waitcnt lgkmcnt(0)\ns_barrier")
        aj = g.lab("L_ajoin")
        g(f"""s_cmp_gt_u32 s{sWV}, 1
        s_cbranch_scc1 {aj}
        s_lshl_b32 s{sT0}, s{sWV}, 5
        s_add_u32 s{sT0}, s{sT0}, {L_ML}
        v_mov_b32 v36, s{sT0}
        s_mul_i32 s{sT0}, s{sWV}, 768
        s_add_u32 s{sT0}, s{sT0}, {L_PART}
        ds_read_b128 v[32:35], v36
        ds_read_b128 v[36:39], v36 offset:16
        v_lshl_add_u32 v30, v{vLANE}, 2, s{sT0}""")
        offs = [6 * w + j for w in range(4) for j in range(3)]
        for k in range(6):
            g(f"ds_read2st64_b32 v[{8+2*k}:{9+2*k}], v30 offset0:{offs[2*k]} offset1:{offs[2*k+1]}")
        g(f"""s_mul_i32 s{sT0}, s{sSEGH}, {8*3072}
        s_lshl_b32 s{sT1}, s{sSEGP}, 7
        s_add_u32 s{sT0}, s{sT0}, s{sT1}
        s_add_u32 s{sT0}, s{sT0}, s{sBLK}
        v_lshrrev_b32 v20, 3, v{vLANE}
        v_mul_u32_u24 v20, 3072, v20
        v_and_b32 v21, 7, v{vLANE}
        v_lshl_add_u32 v20, v21, 4, v20
        v_and_b32 v21, 1, v{vLANE}
        v_cmp_eq_u32 vcc, 1, v21
        s_waitcnt lgkmcnt(0)
        v_max3_f32 v21, v32, v34, v36
        v_max_f32 v21, v21, v38
        v_sub_f32 v32, v32, v21
        v_sub_f32 v34, v34, v21
        v_sub_f32 v36, v36, v21
        v_sub_f32 v38, v38, v21
        v_exp_f32 v32, v32
        v_exp_f32 v34, v34
        v_exp_f32 v36, v36
        v_exp_f32 v38, v38
        v_mul_f32 v33, v33, v32""")
        for j in range(3):
            g(f"v_mul_f32 v{8+j}, v{8+j}, v32")
        for w in range(1, 4):
            g(f"v_fmac_f32 v33, v{33+2*w}, v{32+2*w}")
            for j in range(3):
                g(f"v_fmac_f32 v{8+j}, v{8+3*w+j}, v{32+2*w}")
        g(f"""v_cndmask_b32 v11, v21, v33, vcc
        buffer_store_dwordx4 v[8:11], v20, {sreg(sWS)}, s{sT0} offen offset:{B_AP} sc1
        {aj}:""")
        g.stamp(3)

        def stage_wo(nl):
            g.y_addr(B_Y1, 256, 2)
            g(f"""v_and_b32 v36, 7, v{vLANE}
            v_lshlrev_b32 v36, 7, v36
            v_lshrrev_b32 v37, 3, v{vLANE}
            v_lshl_add_u32 v36, v37, 4, v36
            s_mul_i32 s{sT0}, s2, 3072
            s_add_u32 s{sT0}, s{sT0}, s{sBLK}
            s_mov_b64 {sreg(sMK, 2)}, -1
            s_cmp_lt_u32 s{sHQ}, 21
            s_cselect_b32 s{sMK+2}, 0x0f0f0f0f, -1
            s_cselect_b32 s{sMK+4}, 0, -1
            s_cmp_eq_u32 s{sHQ}, 21
            s_cselect_b32 s{sMK+4}, 0x0f0f0f0f, s{sMK+4}
            s_mov_b32 s{sMK+3}, s{sMK+2}
            s_mov_b32 s{sMK+5}, s{sMK+4}
            v_and_b32 v37, 8, v{vLANE}
            v_cmp_eq_u32 vcc, 0, v37
            v_mov_b32 v37, 0xff800000""")
            for r in (12, 13, 14, 16, 17, 18):
                g(f"v_mov_b32 v{r}, 0")
            g("v_cndmask_b32 v15, 0, v37, vcc\nv_cndmask_b32 v19, 0, v37, vcc")
            g.poll_masked([(f"buffer_load_dwordx4 {vr(8+4*k)}, v36, {sreg(sWS)}, s{sT0} offen offset:{B_AP + 1024*k} sc1",
                            list(range(8+4*k, 12+4*k))) for k in range(3)], 37)
            g.stamp(4)
            dp = ("quad_perm:[1,0,3,2]", "quad_perm:[2,3,0,1]", "row_half_mirror")
            for k in range(3):
                g(f"v_mov_b32 v{32+k}, v{11+4*k}")
            for k in range(3):
                g(f"v_mov_b32_dpp v{32+k}, v{11+4*k} row_ror:8 row_mask:0xf bank_mask:0xc")
            for k in range(3):
                g(f"v_mov_b32_dpp v{11+4*k}, v{11+4*k} row_ror:8 row_mask:0xf bank_mask:0x3")
            g("v_max3_f32 v35, v32, v33, v34")
            for d in dp:
                g(f"s_nop 1\nv_max_f32_dpp v35, v35, v35 {d} row_mask:0xf bank_mask:0xf")
            for k in range(3):
                g(f"v_sub_f32 v{32+k}, v{32+k}, v35")
            for k in range(3):
                g(f"v_exp_f32 v{32+k}, v{32+k}")
            for r in range(4):
                g(f"v_mul_f32 v{8+r}, v{8+r}, v32")
            for k in (1, 2):
                for r in range(4):
                    g(f"v_fmac_f32 v{8+r}, v{8+4*k+r}, v{32+k}")
            for d in dp:
                for r in range(4):
                    g(f"v_add_f32_dpp v{8+r}, v{8+r}, v{8+r} {d} row_mask:0xf bank_mask:0xf")
            g("v_rcp_f32 v11, v11\ns_nop 0")
            for j in range(3):
                g(f"v_mul_f32 v{8+j}, v{8+j}, v11\nv_cvt_pk_bf16_f32 v{36+j}, v{8+j}, v{8+j}")
            g.mkA(32, 36)
            g.mkA(24, 37)
            for i in range(nl):
                g(f"v_mfma_f32_16x16x32_bf16 {vr(vACC+4*i)}, v[32:35], {WOG[0][i]}, 0")
            g.mkA(28, 38)
            for i in range(nl):
                g(f"v_mfma_f32_16x16x32_bf16 {vr(vACC+4*i)}, v[24:27], {WOG[1][i]}, {vr(vACC+4*i)}")
            for i in range(nl):
                g(f"v_mfma_f32_16x16x32_bf16 {vr(vACC+4*i)}, v[28:31], {WOG[2][i]}, {vr(vACC+4*i)}")
            g.publish_y(nl)
        g.by_nl(stage_wo)
        g.stamp(5)
        g(f"""s_barrier
        s_sub_u32 s{sT0}, s2, {RED0}
        s_cmp_lt_u32 s{sT0}, {NRED}
        s_cbranch_scc1 L_red
        s_cmp_lg_u32 s{sPASS}, 0
        s_cbranch_scc1 L_nowq""")
        g.ld_wq()
        g(f"""L_nowq:
        s_cmp_ge_u32 s2, {NFFN}
        s_cbranch_scc1 L_notffn""")

        g.ffn_index()
        g.gatewait()

        def stage_ffn(nl):
            g(f"v_add_u32 v39, s{sWB}, v{vL16}")
            for i in range(nl):
                g(f"ds_read_b128 {vr(20+4*i)}, v39 offset:{i*1024}")
            for i in range(nl):
                g(f"ds_read_b128 {ar(aQ+4*i)}, v39 offset:{(nl+i)*1024}")
            g.y_addr(B_Y2, NFFN, sT3)
            g.x_gather(B_X1, "ffn")
            g.stamp(6)
            g.ln()
            g("s_waitcnt lgkmcnt(0)")
            for i in range(nl):
                g(f"v_and_b32 v32, 0xffff, v{36+i}\nv_and_b32 v33, 0xffff0000, v{36+i}")
                for e in range(8):
                    c = f"v{8+e}" if i else "0"
                    g(f"v_dot2_f32_bf16 v{8+e}, v{20+4*i+e//2}, v{32+(e&1)}, {c}")
                g("s_nop 2")
            for e in range(4):
                g(f"v_permlane32_swap_b32 v{8+e}, v{12+e}")
            for e in range(4):
                g(f"v_add_f32 v{8+e}, v{8+e}, v{12+e}")
            g(f"""v_lshrrev_b32 v32, 3, v{vLANE}
            v_lshlrev_b32 v32, 4, v32
            v_permlane16_swap_b32 v8, v10
            v_permlane16_swap_b32 v9, v11
            v_add_u32 v32, {L_HP}, v32
            v_add_f32 v8, v8, v10
            v_add_f32 v9, v9, v11
            s_lshl_b32 s{sT0}, s{sWV}, 2
            v_add_u32 v33, s{sT0}, v32
            v_add_f32_dpp v10, v8, v8 row_ror:8 row_mask:0xf bank_mask:0x3
            s_nop 1
            v_add_f32_dpp v10, v9, v9 row_ror:8 row_mask:0xf bank_mask:0xc
            s_nop 1
            v_add_f32_dpp v10, v10, v10 quad_perm:[1,0,3,2] row_mask:0xf bank_mask:0xf
            s_nop 1
            v_add_f32_dpp v10, v10, v10 quad_perm:[2,3,0,1] row_mask:0xf bank_mask:0xf
            s_nop 1
            v_add_f32_dpp v10, v10, v10 row_half_mirror row_mask:0xf bank_mask:0xf
            ds_write_b32 v33, v10
            s_waitcnt lgkmcnt(0)
            s_barrier
            ds_read_b128 v[8:11], v32
            s_waitcnt lgkmcnt(0)
            v_add_f32 v8, v8, v9
            v_add_f32 v10, v10, v11
            v_add_f32 v8, v8, v10""")
            g.bf16r(8, 8)
            g(f"""v_mul_f32 v9, {NLOG2E:#x}, v8
            v_exp_f32 v9, v9
            s_nop 0
            v_add_f32 v9, 1.0, v9
            v_rcp_f32 v9, v9
            s_nop 0
            v_mul_f32 v8, v8, v9
            v_cvt_pk_bf16_f32 v36, v8, v8""")
            g.mkA(32, 36)
            g("s_nop 1")
            for i in range(nl):
                g(f"v_mfma_f32_16x16x32_bf16 {vr(vACC+4*i)}, v[32:35], {ar(aQ+4*i)}, 0")
            g.publish_y(nl)
        g.by_nl(stage_ffn)
        g.stamp(7)
        g("L_notffn:")
        g(f"s_cmp_lg_u32 s{sPASS}, 0\ns_cbranch_scc1 L_fin")

        g("L_getx2:")
        g.q_prep()
        g.x_gather(B_X2, "q")
        g.stamp(8)
        g.dump_stamps(1)
        g.q_partial()
        g.stamp(9)
        qj, q1 = g.lab("L_qjoin"), g.lab("L_q1")
        g(f"s_cmp_lg_u32 s{sWV}, 0\ns_cbranch_scc1 {q1}")
        g.q_publish(W_B0 + B_QP)
        g.stamp(0)
        g(f"s_branch {qj}\n{q1}:\ns_cmp_eq_u32 s{sWV}, 3\ns_cbranch_scc1 {qj}")
        g.q_addr(W_B0 + B_QP)
        for k in range(8):
            g(f"s_mov_b32 s{MASKS[k]}, -1\ns_mov_b32 s{MASKS[k]+1}, 0xffff")
        if g.qd:
            g(f"s_sleep {g.qd}")
        g.poll_masked(g.q_loads(), 40, live=0xffff)
        g.stamp(1)
        g.q_sum()
        g(f"{qj}:")
        for i in range(3):
            g(f"s_add_u32 s{sOFF}, s{sBB}, {order[i]*STR}")
            g.issue(i, 1, sOFF, g.pol)
        g.init_softmax()
        g(f"""s_mul_i32 s{sT0}, s{sWV}, {NLDS*UB}
        v_add_u32 v{vLA}, s{sT0}, v{vL16}
        s_mov_b32 s{sBLK}, {W_B1}
        s_mov_b32 s{sPASS}, 1
        s_waitcnt lgkmcnt(0)
        s_barrier""")
        g.load_q(1)
        g.stamp(10)
        g("s_waitcnt lgkmcnt(0)\ns_branch L_pass2")

        g("L_red:")
        nq = g.lab("L_nowq")
        g.gatewait()
        g.reducer(B_Y1, 256, False, B_X1, 40)
        g.stamp(6)
        g(f"s_barrier\ns_cmp_lg_u32 s{sPASS}, 0\ns_cbranch_scc1 {nq}")
        g.ld_wq()
        g(f"{nq}:")
        g.reducer(B_Y2, NFFN, True, B_X2, 32)
        g.stamp(7)
        g(f"s_cmp_eq_u32 s{sPASS}, 0\ns_cbranch_scc1 L_getx2")
        g("L_fin:")
        g("s_waitcnt vmcnt(0)")
        g.stamp(8)
        g.dump_stamps()
        g("s_waitcnt vmcnt(0)")
        g("L_end:\ns_endpgm")

        out = HEADER + f"; @launch grid=(256,1,1) block=(256,1,1) lds={LDS_BYTES}\n"
        out += f'.amdgcn_target "amdgcn-amd-amdhsa--gfx950"\n.text\n.globl {KN}\n.p2align 8\n.type {KN},@function\n{KN}:\n'
        out += "\n".join(self.L) + "\n"
        out += f""".section .rodata,"a"
.p2align 6
.amdhsa_kernel {KN}
  .amdhsa_next_free_vgpr 512
  .amdhsa_next_free_sgpr 102
  .amdhsa_accum_offset 256
  .amdhsa_group_segment_fixed_size 0
  .amdhsa_kernarg_size 88
  .amdhsa_user_sgpr_count 2
  .amdhsa_user_sgpr_kernarg_segment_ptr 1
  .amdhsa_system_sgpr_workgroup_id_x 1
.end_amdhsa_kernel
"""
        return out


def parse(spec):
    kw = {}
    if spec:
        for kv in spec.split(","):
            k, v = kv.split("=")
            if k not in ("xa", "xb"):
                try:
                    v = ast.literal_eval(v.replace(":", ","))
                except Exception:
                    pass
            if "pol" in k:
                v = "" if v == "def" else v.replace("+", " ")
            kw[k] = v
    return kw


if __name__ == "__main__":
    open(sys.argv[1], "w").write(Gen(**parse(sys.argv[2] if len(sys.argv) > 2 else "")).build())
```

```python
import sys, ast, copy

KN = "interleave_layers__mha_block_cached__dense_activation_silu__decode_kernel"

HEADER = """; Kernarg layout for this problem (88 bytes, ptrs only, base s[0:1]):
"""

KVB = 402653184
UB = 3072
STR = 16 * UB
NF = 46
LDS0, NLDS = 20, 11
NK = 128 - NF
L_W = 4 * NLDS * UB
L_S = L_W + 20480
L_PART = L_S
L_RED = L_PART
L_HP = L_PART
L_XS = L_PART + 3072
L_ML = L_PART + 6144
L_QB = L_ML + 128
L_XK = L_QB + 1152
L_END = L_XK + 128
LDS_BYTES = 163840
assert L_END <= LDS_BYTES
K1 = 1024
W_QP0 = 0
W_B0 = 256 * K1
B_AP = 0
B_Y1 = 768 * K1
B_Y2 = B_Y1 + 640 * K1
B_X1 = B_Y2 + 480 * K1
XREP = 8
B_DN = B_X1 + XREP * 2560
B_X2 = B_DN + 18 * K1
B_QP = B_X2 + XREP * 2560
B_SIZE = B_QP + 192 * K1
W_B1 = W_B0 + B_SIZE
NCLR = 4
assert W_B1 + B_X2 <= W_B0 + NCLR * 1024 * K1
W_STAMP = 6144 * K1
WS_REC = 8192 * K1
NRED = 20
RED0 = 192
NFFN = 192
SCALE = 0x3d93cd3a
LOG2E = 0x3fb8aa3b
NLOG2E = 0xbfb8aa3b
INV640 = 0x3acccccd
EPS = 0x3727c5ac
SPIN = 400000

sK, sV, sWS, sWQ, sWO, sW1, sW2, sX, sOUT, sDBG = 4, 8, 12, 16, 20, 24, 28, 32, 36, 40
sHQ, sS, sWV = 44, 45, 46
sBA, sBB = 47, 48
sNB = 49
sOFF = 50
sLOOP = 51
sM = 52
sPASS = 53
sRET = 54
sBLK = 56
sSEGH = 57
sWB = 58
sCNT = 59
sT0, sT1, sT2, sT3, sT4, sSEGP = 60, 61, 62, 63, 64, 65
sRT2 = 66
sMK = 68
MASKS = [68, 70, 72, 74, 24, 26, 28, 30]
sST = 76

vLANE, vKO, vVO, vL16 = 0, 1, 2, 3
vMK = 4
vACC = 8
vD = 20
vP = 24
vNEG, vLS = 28, 29
vT = 30
vLA, vSC, vSV, vMX = 32, 33, 34, 35
aQ = 240


def sreg(n, k=4):
    return f"s[{n}:{n+k-1}]"


def vr(n, k=4):
    return f"v[{n}:{n+k-1}]" if k > 1 else f"v{n}"


def ar(n, k=4):
    return f"a[{n}:{n+k-1}]" if k > 1 else f"a{n}"


def buf(b):
    if b < 18:
        return [vr(40 + 12 * b + 4 * i) for i in range(3)]
    return [ar(12 * (b - 18) + 4 * i) for i in range(3)]


def kbuf(k):
    if k < LDS0:
        return 3 + k
    if k < LDS0 + NLDS:
        return None
    return 3 + k - NLDS


STAGE = [ar(252), vr(36), vr(vP)]


def vbslot(k):
    return (NK + 85 + 42 - k) % 3


vTW = 40 + 12 * vbslot(2)
WOG = [buf(vbslot(2)), buf(vbslot(1)), [ar(aQ), ar(aQ + 4), ar(aQ + 8)]]


class Gen:
    def __init__(self, pol="nt", polx="sc1", wpol="nt", stamps=False, burst=(2,), gate=0, xa="100", xb=None, order2=None, touch=0, pad=0, xw=4, xrep=8, pre=0, l2=(1, 2, 3, 4, 5, 6, 7, 8), qd=10, mix=(1, 1), nclr=NCLR, noffn=0, cpol='sc1 nt'):
        self.nclr = nclr
        self.noffn = noffn
        self.cpol = cpol
        self.mix = mix
        self.l2 = l2
        self.qd = qd
        self.xw = xw
        self.xrep = xrep
        self.pre = pre
        self.pad = pad
        self.touch = touch
        self.L = []
        self.pol = (" " + pol) if pol else ""
        self.polx = (" " + polx) if polx else ""
        self.wpol = (" " + wpol) if wpol else ""
        self.stamps = stamps
        self.uid = 0
        self.q = []
        self.burst = (burst,) if isinstance(burst, int) else tuple(burst)
        self.gate = gate
        ex = lambda p: p if len(p) == 9 else "".join(c * 3 for c in p)
        self.xa = ex(xa)
        self.xb = ex(xb if xb is not None else xa)
        self.order2 = order2

    def __call__(self, s):
        for line in s.strip("\n").split("\n"):
            line = line.strip()
            if line:
                self.L.append(line if line.endswith(":") else "    " + line)

    def lab(self, p="L"):
        self.uid += 1
        return f"{p}_{self.uid}"

    def op(self, tag, n=1):
        self.q += [tag] * n

    def wait(self, tag):
        if tag not in self.q:
            return
        last = len(self.q) - 1 - self.q[::-1].index(tag)
        self.q = self.q[last + 1:]
        assert len(self.q) < 64
        self(f"s_waitcnt vmcnt({len(self.q)})")

    def stamp(self, idx):
        if self.stamps:
            assert idx < 12
            self(f"s_memrealtime s[{sST+2*idx}:{sST+2*idx+1}]")

    def dump_stamps(self, part=3, ps=1):
        if not self.stamps:
            return
        if part & 1:
            self("s_waitcnt lgkmcnt(0)")
            for i in range(12):
                self(f"v_writelane_b32 v{vT}, s{sST+2*i}, {i}")
            self(f"v_accvgpr_write_b32 a252, v{vT}")
        if part & 2:
            self(f"""s_nop 1
            v_accvgpr_read_b32 v{vT}, a252
            s_getreg_b32 s{sT0}, hwreg(HW_REG_XCC_ID)
            v_writelane_b32 v{vT}, s{sT0}, 15
            s_lshl_b32 s{sT0}, s2, 2
            s_add_u32 s{sT0}, s{sT0}, s{sWV}
            s_lshl_b32 s{sT0}, s{sT0}, 7
            s_add_u32 s{sT0}, s{sT0}, {W_STAMP + 64*ps}
            v_lshlrev_b32 v{vT+1}, 2, v{vLANE}
            s_mov_b64 exec, 0xffff
            buffer_store_dword v{vT}, v{vT+1}, {sreg(sWS)}, s{sT0} offen
            s_mov_b64 exec, -1""")

    def maxall(self, regs, tmp):
        r = list(regs)
        if len(r) % 2 == 0:
            self(f"v_max_u32 v{tmp}, v{r[0]}, v{r[1]}")
            r = r[2:]
        else:
            self(f"v_max3_u32 v{tmp}, v{r[0]}, v{r[1]}, v{r[2]}")
            r = r[3:]
        while r:
            self(f"v_max3_u32 v{tmp}, v{tmp}, v{r[0]}, v{r[1]}")
            r = r[2:]

    def poll(self, loads, regs, tmp, pre=False):
        top, chk, done = self.lab("L_poll"), self.lab("L_chk"), self.lab("L_got")
        self(f"s_mov_b32 s{sCNT}, {SPIN}")
        if pre:
            self(f"s_branch {chk}")
        self(f"{top}:")
        for ld in loads:
            self(ld)
        self(f"s_waitcnt vmcnt(0)\n{chk}:")
        self.maxall(regs, tmp)
        self(f"""v_cmp_eq_u32 vcc, -1, v{tmp}
        s_cbranch_vccz {done}
        s_sub_u32 s{sCNT}, s{sCNT}, 1
        s_cbranch_scc0 {top}
        {done}:""")

    def poll_masked(self, loads, tmp, live=None):
        top, done = self.lab("L_poll"), self.lab("L_got")
        M = lambda k: sreg(MASKS[k], 2)
        self(f"s_mov_b32 s{sCNT}, {SPIN}\n{top}:")
        for k, (ld, _) in enumerate(loads):
            self(f"s_mov_b64 exec, {M(k)}\n{ld}")
        self("s_mov_b64 exec, -1")
        if live is not None:
            self(f"s_mov_b32 exec_hi, {live:#x}")
        for k, (_, regs) in enumerate(loads):
            if k in (0, 3):
                self(f"s_waitcnt vmcnt({len(loads) - 3 if (k == 0 and len(loads) > 3) else 0})")
            self.maxall(regs, tmp + (k & 1))
            self(f"v_cmp_eq_u32 {M(k)}, -1, v{tmp + (k & 1)}")
            if k == 2:
                self(f"s_or_b64 vcc, {M(0)}, {M(1)}")
            if k > 2:
                self(f"s_or_b64 vcc, vcc, {M(k-1)}")
        self(f"""s_or_b64 vcc, vcc, {M(len(loads)-1)}
        s_cbranch_scc0 {done}
        s_sub_u32 s{sCNT}, s{sCNT}, 1
        s_cbranch_scc0 {top}
        {done}:""")

    def bf16r(self, d, s):
        self(f"v_cvt_pk_bf16_f32 v{d}, v{s}, v{s}\nv_and_b32 v{d}, 0xffff0000, v{d}")

    def mkA(self, dst, src):
        for r in range(4):
            self(f"v_and_b32 v{dst+r}, v{vMK+r}, v{src}")

    def issue(self, b, kv, so, pol, tag=None):
        srd, vo = (sK, vKO) if kv == 0 else (sV, vVO)
        for j, r in enumerate(buf(b)):
            self(f"buffer_load_dwordx4 {r}, v{vo}, {sreg(srd)}, s{so} offen offset:{128*j}{pol if isinstance(pol, str) else pol[j]}")
        if tag is not None:
            self.op(tag, 3)

    def score(self, regs):
        T = vT
        self(f"""v_mfma_f32_16x16x32_bf16 {vr(vD)}, {regs[0]}, {ar(aQ)}, 0
        v_mfma_f32_16x16x32_bf16 {vr(vD)}, {regs[1]}, {ar(aQ+4)}, {vr(vD)}
        v_mfma_f32_16x16x32_bf16 {vr(vD)}, {regs[2]}, {ar(aQ+8)}, {vr(vD)}
        s_nop 7
        v_add_f32_dpp v{T}, v{vD+1}, v{vD} quad_perm:[1,0,3,2] row_mask:0xf bank_mask:0x3
        s_nop 1
        v_add_f32_dpp v{T}, v{vD+3}, v{vD+2} quad_perm:[1,0,3,2] row_mask:0xf bank_mask:0xc
        s_nop 1
        v_mov_b32_dpp v{T+1}, v{T} quad_perm:[0,0,2,2] row_mask:0xf bank_mask:0xf""")
        self.bf16r(T + 1, T + 1)
        self(f"v_mul_f32 v{T+1}, {SCALE:#x}, v{T+1}\nv_cvt_pk_bf16_f32 v{T+1}, v{T+1}, v{T+1}")

    def qk_store(self, regs, off):
        self.score(regs)
        self(f"""ds_write_b16 v{vSC}, v{vT+1} offset:{off}
        v_and_b32 v{vT}, 0xffff0000, v{vT+1}
        v_max_f32 v{vMX}, v{vMX}, v{vT}""")

    def prob(self, src):
        T = vT
        self(f"""v_fmamk_f32 v{T+1}, v{src}, {LOG2E:#x}, v{vNEG}
        v_exp_f32 v{T+1}, v{T+1}
        s_nop 0
        v_add_f32 v{vLS}, v{vLS}, v{T+1}
        v_cvt_pk_bf16_f32 v{T+1}, v{T+1}, v{T+1}""")
        self.mkA(vP, T + 1)

    def qk_online(self, k):
        if kbuf(k) is None:
            for i in range(3):
                self(f"ds_read_b128 {STAGE[i]}, v{vLA} offset:{(k-LDS0)*UB + i*1024}")
            self("s_waitcnt lgkmcnt(0)")
            self.score(STAGE)
        else:
            self.score(buf(kbuf(k)))
        sk = self.lab("L_nors")
        self(f"""v_and_b32 v{vT+1}, 0xffff0000, v{vT+1}
        v_cmp_lt_f32 vcc, s{sM}, v{vT+1}
        s_cbranch_vccz {sk}
        s_call_b64 s[{sRET}:{sRET+1}], L_rescale
        {sk}:""")
        self.prob(vT + 1)

    def p_stored(self, off):
        self(f"ds_read_u16_d16_hi v{vSV}, v{vSC} offset:{off}\ns_waitcnt lgkmcnt(0)")
        self.prob(vSV)

    def pv(self, b):
        for j, r in enumerate(buf(b)):
            self(f"v_mfma_f32_16x16x32_bf16 {vr(vACC+4*j)}, {vr(vP)}, {r}, {vr(vACC+4*j)}")

    def wavemax(self, d, s):
        self(f"""s_nop 1
        v_max_f32_dpp v{d}, v{s}, v{s} row_ror:8 row_mask:0xf bank_mask:0xf
        s_nop 1
        v_max_f32_dpp v{d}, v{d}, v{d} row_bcast:15 row_mask:0xa bank_mask:0xf
        s_nop 1
        v_max_f32_dpp v{d}, v{d}, v{d} row_bcast:31 row_mask:0xc bank_mask:0xf
        s_nop 1
        v_readlane_b32 s{sM}, v{d}, 63
        s_nop 1
        v_mov_b32 v{d}, s{sM}
        v_mul_f32 v{d}, {NLOG2E:#x}, v{d}""")

    def rescale_sub(self):
        self("L_rescale:")
        self.wavemax(vD, vT + 1)
        self(f"""v_sub_f32 v{vD+1}, v{vD}, v{vNEG}
        v_exp_f32 v{vD+1}, v{vD+1}
        v_mov_b32 v{vNEG}, v{vD}
        v_mul_f32 v{vLS}, v{vLS}, v{vD+1}""")
        for r in range(12):
            self(f"v_mul_f32 v{vACC+r}, v{vACC+r}, v{vD+1}")
        self(f"s_setpc_b64 s[{sRET}:{sRET+1}]")

    def init_softmax(self):
        for r in range(12):
            self(f"v_mov_b32 v{vACC+r}, 0")
        self(f"""v_mov_b32 v{vLS}, 0
        v_mov_b32 v{vNEG}, 0x7f800000
        s_mov_b32 s{sM}, 0xff800000""")

    def load_q(self, seg):
        self(f"""v_and_b32 v{vT}, 1, v{vLANE}
        v_lshlrev_b32 v{vT}, 6, v{vT}
        v_and_b32 v{vT+1}, 48, v{vLANE}
        v_add_u32 v{vT}, v{vT}, v{vT+1}
        v_add_u32 v{vT}, {L_QB + 384*seg}, v{vT}""")
        for j in range(3):
            self(f"ds_read_b128 {ar(aQ+4*j)}, v{vT} offset:{128*j}")

    def flush(self):
        T = vT
        self(f"""v_add_f32_dpp v{vLS}, v{vLS}, v{vLS} row_ror:8 row_mask:0xf bank_mask:0xf
        v_sub_f32 v{vNEG}, 0, v{vNEG}
        s_lshl_b32 s{sT0}, s{sT4}, 2
        v_add_f32_dpp v{vLS}, v{vLS}, v{vLS} row_bcast:15 row_mask:0xa bank_mask:0xf
        s_add_u32 s{sT0}, s{sT0}, s{sWV}
        s_lshl_b32 s{sT0}, s{sT0}, 3
        v_add_f32_dpp v{vLS}, v{vLS}, v{vLS} row_bcast:31 row_mask:0xc bank_mask:0xf
        s_add_u32 s{sT0}, s{sT0}, {L_ML}
        v_mov_b32 v{T}, s{sT0}
        s_mov_b32 exec_lo, 0
        s_mov_b32 exec_hi, 0x80000000
        ds_write_b64 v{T}, v[{vNEG}:{vLS}]
        s_mov_b64 exec, -1
        s_lshl_b32 s{sT0}, s{sWV}, 1
        s_add_u32 s{sT0}, s{sT0}, s{sT4}
        s_mul_i32 s{sT0}, s{sT0}, 768
        s_add_u32 s{sT0}, s{sT0}, {L_PART}
        v_lshrrev_b32 v{T+1}, 5, v{vLANE}
        v_lshl_add_u32 v{T+1}, v{T+1}, 8, s{sT0}
        v_and_b32 v{vP}, 7, v{vLANE}
        v_lshl_add_u32 v{T+1}, v{vP}, 5, v{T+1}
        v_and_b32 v{vP}, 16, v{vLANE}
        v_add_u32 v{T+1}, v{T+1}, v{vP}""")
        self.parity(3)
        self(f"""s_mov_b32 exec_lo, 0x00ff00ff
        s_mov_b32 exec_hi, 0x00ff00ff
        ds_write_b128 v{T+1}, {vr(vACC)}
        s_mov_b32 exec_hi, 0
        ds_write_b128 v{T+1}, {vr(vACC+8)} offset:512
        s_mov_b64 exec, -1""")

    def parity(self, nl):
        for r in range(4):
            self(f"v_permlane32_swap_b32 v{vACC+r}, v{vACC+4+r}")
        if nl == 3:
            for r in range(4):
                self(f"v_permlane32_swap_b32 v{vACC+8+r}, v{vD+r}")
        else:
            self("s_nop 0")
        for r in range(4):
            self(f"v_add_f32_dpp v{vACC+r}, v{vACC+4+r}, v{vACC+r} row_ror:8 row_mask:0xf bank_mask:0xf")
        if nl == 3:
            for r in range(4):
                self(f"v_add_f32_dpp v{vACC+8+r}, v{vD+r}, v{vACC+8+r} row_ror:8 row_mask:0xf bank_mask:0xf")

    def arrive(self, step):
        if self.pre & 1 and step == 0:
            sk = self.lab("L_notouch")
            self(f"""s_cmp_lg_u32 s{sWV}, 2
            s_cbranch_scc1 {sk}
            s_mul_i32 s{sT0}, s2, 3072
            s_add_u32 s{sT0}, s{sT0}, s{sBLK}
            v_lshlrev_b32 v37, 7, v{vLANE}
            s_mov_b64 exec, 0xffffff
            buffer_load_dword v38, v37, {sreg(sWS)}, s{sT0} offen sc1
            s_mov_b64 exec, -1
            {sk}:""")
        if self.pre & 2 and step == 0:
            sk = self.lab("L_notouch")
            self(f"""s_sub_u32 s{sT0}, s2, {RED0}
            s_cmp_ge_u32 s{sT0}, {NRED}
            s_cbranch_scc1 {sk}
            s_cmp_ge_u32 s{sWV}, 2
            s_cbranch_scc1 {sk}
            s_lshl_b32 s{sT0}, s{sT0}, 1
            s_add_u32 s{sT0}, s{sT0}, s{sWV}
            s_lshl_b32 s{sT0}, s{sT0}, 13
            s_add_u32 s{sT0}, s{sT0}, s{sBLK}
            s_add_u32 s{sT0}, s{sT0}, {B_Y1}
            v_lshlrev_b32 v37, 7, v{vLANE}
            buffer_load_dword v38, v37, {sreg(sWS)}, s{sT0} offen sc1
            {sk}:""")
        if not self.gate:
            return
        sk = self.lab("L_noarr")
        self(f"s_cmp_lg_u32 s{sWV}, 3\ns_cbranch_scc1 {sk}")
        if step == 0:
            self(f"""s_lshl_b32 s{sT0}, s{sS}, 8
            s_add_u32 s{sT0}, s{sT0}, s{sBLK}
            s_add_u32 s{sT0}, s{sT0}, {B_DN}
            v_mov_b32 v36, 1
            v_mov_b32 v37, 0
            s_mov_b64 exec, 1
            buffer_atomic_add v36, v37, {sreg(sWS)}, s{sT0} offen sc0 sc1
            s_mov_b64 exec, -1""")
        else:
            self(f"""v_readfirstlane_b32 s{sT0}, v36
            v_lshlrev_b32 v37, 8, v{vLANE}
            v_mov_b32 v36, 1
            s_cmp_lg_u32 s{sT0}, 30
            s_cbranch_scc1 {sk}
            s_add_u32 s{sT0}, s{sBLK}, {B_DN + 2048}
            buffer_atomic_add v36, v37, {sreg(sWS)}, s{sT0} offen sc1""")
        self(f"{sk}:")

    def gatewait(self):
        if not self.gate:
            return
        top, done, sk = self.lab("L_gate"), self.lab("L_gated"), self.lab("L_gskip")
        self(f"""s_cmp_lg_u32 s{sWV}, 0
        s_cbranch_scc1 {sk}
        s_and_b32 s{sT0}, s2, 63
        s_lshl_b32 s{sT0}, s{sT0}, 8
        s_add_u32 s{sT0}, s{sT0}, s{sBLK}
        s_add_u32 s{sT0}, s{sT0}, {B_DN + 2048}
        v_mov_b32 v37, 0
        s_mov_b32 s{sCNT}, {SPIN}
        s_mov_b64 exec, 1
        {top}:
        buffer_load_dword v36, v37, {sreg(sWS)}, s{sT0} offen sc1
        s_waitcnt vmcnt(0)
        v_cmp_eq_u32 vcc, 7, v36
        s_cbranch_vccnz {done}
        s_sleep 2
        s_sub_u32 s{sCNT}, s{sCNT}, 1
        s_cbranch_scc0 {top}
        {done}:
        s_mov_b64 exec, -1
        {sk}:
        s_barrier""")

    def dma_tiles(self, srd, vaddr, tiles):
        for lo, imm in tiles:
            self(f"""s_add_u32 m0, s{sWB}, {lo}
            s_add_u32 s{sT2}, s{sT1}, {imm}
            buffer_load_dwordx4 v{vaddr}, {sreg(srd)}, s{sT2} offen lds""")

    def by_nl(self, fn):
        l2, le = self.lab("L_nl2"), self.lab("L_nle")
        self(f"s_cmp_ge_u32 s{sWV}, 2\ns_cbranch_scc1 {l2}")
        fn(3)
        self(f"s_branch {le}\n{l2}:")
        fn(2)
        self(f"{le}:")

    def ld_wq(self):
        T = vT
        self(f"""v_lshrrev_b32 v{T}, 3, v{vLANE}
        v_mul_u32_u24 v{T}, {16*12288}, v{T}
        v_and_b32 v{T+1}, 7, v{vLANE}
        v_lshl_add_u32 v{T+1}, v{T+1}, 4, v{T}
        v_add_u32 v{T}, v{T}, v{T+1}
        s_lshl_b32 s{sT1}, s{sS}, 2
        s_add_u32 s{sT1}, s{sT1}, s{sWV}
        s_mul_i32 s{sT1}, s{sT1}, 12288
        s_mul_i32 s{sT2}, s{sHQ}, 384
        s_add_u32 s{sT1}, s{sT1}, s{sT2}
        s_add_u32 s{sT2}, s{sT1}, {256*12288}""")
        for i in range(2):
            for j, r in enumerate(WOG[i]):
                self(f"buffer_load_dwordx4 {r}, v{T}, {sreg(sWQ)}, s{sT1+i} offen offset:{128*j}{self.wpol}")
        sk = self.lab("L_wq2")
        self(f"""s_cmp_ge_u32 s{sWV}, 2
        s_cbranch_scc1 {sk}
        s_mul_i32 s{sT2}, s{sS}, {2*12288}
        s_sub_u32 s{sT1}, s{sT1}, s{sT2}
        s_add_u32 s{sT1}, s{sT1}, {512*12288}""")
        for j, r in enumerate(WOG[2]):
            self(f"buffer_load_dwordx4 {r}, v{T+1}, {sreg(sWQ)}, s{sT1} offen offset:{128*j}{self.wpol}")
        self(f"{sk}:")
        self.op("w", 6)

    def ld_wo(self, j):
        self(f"""v_lshrrev_b32 v38, 3, v{vLANE}
        v_mul_u32_u24 v38, 1280, v38
        v_and_b32 v39, 7, v{vLANE}
        v_lshl_add_u32 v38, v39, 4, v38
        s_mul_i32 s{sT1}, s{sHQ}, 24
        s_add_u32 s{sT1}, s{sT1}, s{sS}
        s_mul_i32 s{sT1}, s{sT1}, {8*1280}
        s_lshl_b32 s{sT2}, s{sWV}, 7
        s_add_u32 s{sT1}, s{sT1}, s{sT2}
        s_add_u32 s{sT1}, s{sT1}, {j*64*1280}""")
        for i in range(3):
            if i == 2:
                self(f"s_cmp_lt_u32 s{sWV}, 2\ns_cselect_b64 exec, -1, 1")
            self(f"buffer_load_dwordx4 {WOG[j][i]}, v38, {sreg(sWO)}, s{sT1} offen offset:{512*i}{self.wpol}")
        self("s_mov_b64 exec, -1")
        self.op("w", 3)

    def dma_ffn(self):
        T = vT
        self(f"""v_mul_u32_u24 v{T}, {4*3072}, v{vLANE}
        v_mul_u32_u24 v{T+1}, {2*3072}, v{vLANE}
        s_mul_i32 s{sT1}, s{sWV}, 3072
        s_lshl_b32 s{sT2}, s{sT3}, 4
        s_add_u32 s{sT1}, s{sT1}, s{sT2}""")
        self.dma_tiles(sW1, T, [(i*1024, i*256*3072) for i in range(2)])
        sk = self.lab("L_w12")
        self(f"s_cmp_ge_u32 s{sWV}, 2\ns_cbranch_scc1 {sk}")
        self.dma_tiles(sW1, T + 1, [(2048, 512*3072)])
        self(f"{sk}:")
        self(f"""v_lshrrev_b32 v{T}, 3, v{vLANE}
        v_mul_u32_u24 v{T}, 1280, v{T}
        v_and_b32 v{T+1}, 7, v{vLANE}
        v_lshl_add_u32 v{T}, v{T+1}, 4, v{T}
        s_mul_i32 s{sT1}, s{sT3}, {8*1280}
        s_lshl_b32 s{sT2}, s{sWV}, 7
        s_add_u32 s{sT1}, s{sT1}, s{sT2}""")
        self.by_nl(lambda nl: self.dma_tiles(sW2, T, [((nl+i)*1024, i*512) for i in range(nl)]))

    def ffn_index(self):
        self(f"""s_and_b32 s{sT3}, s2, 7
        s_mul_i32 s{sT3}, s{sT3}, 24
        s_lshr_b32 s{sT2}, s2, 3
        s_add_u32 s{sT3}, s{sT3}, s{sT2}""")

    def ln(self):
        S1, S2, T = 18, 19, 32
        self(f"v_readfirstlane_b32 s{sT0}, v8\ns_nop 1")
        self(f"v_subrev_f32 v{S1}, s{sT0}, v8\nv_mul_f32 v{S2}, v{S1}, v{S1}")
        for i in range(1, 10):
            self(f"v_subrev_f32 v{T+(i&1)}, s{sT0}, v{8+i}\nv_add_f32 v{S1}, v{S1}, v{T+(i&1)}\nv_fmac_f32 v{S2}, v{T+(i&1)}, v{T+(i&1)}")
        self("s_nop 0")
        for d in ("quad_perm:[1,0,3,2] row_mask:0xf", "quad_perm:[2,3,0,1] row_mask:0xf", "row_half_mirror row_mask:0xf",
                  "row_mirror row_mask:0xf", "row_bcast:15 row_mask:0xa", "row_bcast:31 row_mask:0xc"):
            self(f"""s_nop 0
            v_add_f32_dpp v{S1}, v{S1}, v{S1} {d} bank_mask:0xf
            v_add_f32_dpp v{S2}, v{S2}, v{S2} {d} bank_mask:0xf""")
        self(f"""s_nop 0
        v_readlane_b32 s{sT1}, v{S1}, 63
        v_readlane_b32 s{sT2}, v{S2}, 63
        v_mov_b32 v{T}, {INV640:#x}
        s_nop 0
        v_mul_f32 v{S1}, s{sT1}, v{T}
        v_mul_f32 v{S2}, s{sT2}, v{T}
        v_fma_f32 v{S2}, -v{S1}, v{S1}, v{S2}
        v_max_f32 v{S2}, 0, v{S2}
        v_add_f32 v{S1}, s{sT0}, v{S1}""")
        self.bf16r(S1, S1)
        self.bf16r(S2, S2)
        self(f"v_add_f32 v{S2}, {EPS:#x}, v{S2}")
        self.bf16r(S2, S2)
        self(f"v_sqrt_f32 v{S2}, v{S2}\ns_nop 0")
        self.bf16r(S2, S2)
        self(f"v_rcp_f32 v{S2}, v{S2}")
        for i in range(3):
            self(f"v_sub_f32 v{36+i}, v{36+i}, v{S1}")
            self.bf16r(36 + i, 36 + i)
        for i in range(3):
            self(f"v_mul_f32 v{36+i}, v{36+i}, v{S2}\nv_cvt_pk_bf16_f32 v{36+i}, v{36+i}, v{36+i}")

    def x_addr(self, mode):
        if mode == "ffn":
            self(f"v_mov_b32 v32, v{vL16}\nv_lshlrev_b32 v33, 3, v{vLANE}")
        else:
            self(f"""v_add_u32 v32, s{sS}, v{vLANE}
            v_and_b32 v32, 7, v32
            v_and_or_b32 v32, v{vLANE}, 56, v32
            v_lshlrev_b32 v33, 3, v32
            v_lshlrev_b32 v32, 4, v32""")

    def x_pick(self, mode):
        self(f"""s_bitcmp1_b32 s{sWV}, 0
        s_cselect_b64 vcc, -1, 0
        v_cndmask_b32 v36, v8, v9, vcc
        v_cndmask_b32 v34, v10, v11, vcc
        v_cndmask_b32 v37, v12, v13, vcc
        v_cndmask_b32 v35, v14, v15, vcc
        v_cndmask_b32 v38, v16, v17, vcc
        s_bitcmp1_b32 s{sWV}, 1
        s_cselect_b64 vcc, -1, 0
        v_cndmask_b32 v36, v36, v34, vcc
        v_cndmask_b32 v37, v37, v35, vcc""")
        if mode == "q":
            self("s_nop 0")
            for r in (38, 36, 37):
                self(f"v_mov_b32_dpp v{r}, v{r} row_newbcast:0 row_mask:0xf bank_mask:0x3")
            for r in (38, 36, 37):
                self(f"v_mov_b32_dpp v{r}, v{r} row_newbcast:8 row_mask:0xf bank_mask:0xc")

    def x_gather(self, xoff, mode):
        self.x_addr(mode)
        self(f"""s_and_b32 s{sT1}, s2, {self.xrep-1}
        s_mul_i32 s{sT1}, s{sT1}, 2560
        s_add_u32 s{sT1}, s{sT1}, s{sBLK}
        s_add_u32 s{sT1}, s{sT1}, {xoff}""")
        ws = sreg(sWS)
        sk, j = self.lab("L_xskip"), self.lab("L_xjoin")
        if self.xw == 1:
            self(f"""v_add_u32 v34, {L_XS}, v{vL16}
            v_lshlrev_b32 v35, 3, v{vLANE}
            v_add_u32 v35, {L_XS + 2048}, v35
            s_cmp_lg_u32 s{sWV}, 0
            s_cbranch_scc1 {sk}""")
        for k in range(3):
            self(f"s_mov_b64 {sreg(MASKS[k], 2)}, -1")
        self.poll_masked([(f"buffer_load_dwordx4 v[8:11], v32, {ws}, s{sT1} offen sc1", [8, 9, 10, 11]),
                          (f"buffer_load_dwordx4 v[12:15], v32, {ws}, s{sT1} offen offset:1024 sc1", [12, 13, 14, 15]),
                          (f"buffer_load_dwordx2 v[16:17], v33, {ws}, s{sT1} offen offset:2048 sc1", [16, 17])], 36)
        if self.xw == 1:
            self(f"""ds_write_b128 v34, v[8:11]
            ds_write_b128 v34, v[12:15] offset:1024
            ds_write_b64 v35, v[16:17]
            s_waitcnt lgkmcnt(0)
            s_barrier
            s_branch {j}
            {sk}:
            s_waitcnt vmcnt(0)
            s_barrier
            ds_read_b128 v[8:11], v34
            ds_read_b128 v[12:15], v34 offset:1024
            ds_read_b64 v[16:17], v35
            s_waitcnt lgkmcnt(0)
            {j}:""")
        self.x_pick(mode)

    def y_addr(self, yoff, P, sprod):
        P128 = P * 128
        self(f"""v_bfe_u32 v39, v{vLANE}, 2, 1
        v_lshrrev_b32 v35, 5, v{vLANE}
        v_lshl_add_u32 v39, v35, 3, v39
        v_mul_u32_u24 v39, {P128}, v39
        v_and_b32 v35, 3, v{vLANE}
        v_lshl_add_u32 v39, v35, 5, v39
        v_and_b32 v35, 16, v{vLANE}
        v_add_u32 v39, v39, v35
        s_mul_i32 s{sT4}, s{sWV}, {2*P128}
        s_lshl_b32 s{sLOOP}, s{sprod}, 7
        s_add_u32 s{sT4}, s{sT4}, s{sLOOP}
        s_add_u32 s{sT4}, s{sT4}, s{sBLK}
        s_add_u32 s{sT4}, s{sT4}, {yoff}
        s_add_u32 s{sLOOP}, s{sT4}, {16*P128}""")

    def publish_y(self, nl):
        self("s_nop 7")
        self.parity(nl)
        self(f"""s_mov_b32 exec_lo, 0x00ff00ff
        s_mov_b32 exec_hi, 0x00ff00ff
        buffer_store_dwordx4 {vr(vACC)}, v39, {sreg(sWS)}, s{sT4} offen sc1""")
        if nl == 3:
            self(f"""s_mov_b32 exec_hi, 0
            buffer_store_dwordx4 {vr(vACC+8)}, v39, {sreg(sWS)}, s{sLOOP} offen sc1""")
        self("s_mov_b64 exec, -1")

    def pkadd(self, d, a, n=4):
        for r in range(0, n, 2):
            self(f"v_pk_add_f32 v[{d+r}:{d+r+1}], v[{d+r}:{d+r+1}], v[{a+r}:{a+r+1}]")

    def reducer(self, yoff, P, final_possible, xoff, T):
        nld = P // 32
        self(f"""s_sub_u32 s{sT3}, s2, {RED0}
        s_mul_i32 s{sT1}, s{sT3}, {P*128}
        s_mul_i32 s{sT0}, s{sWV}, {P*32}
        s_add_u32 s{sT1}, s{sT1}, s{sT0}
        s_add_u32 s{sT1}, s{sT1}, s{sBLK}
        s_add_u32 s{sT1}, s{sT1}, {yoff}
        s_add_u32 s{sT2}, s{sT1}, 4096""")
        self(f"""v_and_b32 v{T+3}, 112, v{vL16}
        v_lshrrev_b32 v{T}, 5, v{vLANE}
        v_lshl_add_u32 v{T+2}, v{T}, 2, v{T+3}
        v_and_b32 v{T}, 16, v{vLANE}
        v_lshrrev_b32 v{T}, 1, v{T}
        s_lshl_b32 s{sT0}, s{sWV}, 7
        s_add_u32 s{sT0}, s{sT0}, {L_RED}
        v_add3_u32 v{T+2}, v{T+2}, v{T}, s{sT0}
        v_lshrrev_b32 v{T+4}, 3, v{vLANE}
        v_mul_u32_u24 v{T+4}, 2560, v{T+4}
        v_add_u32 v{T+4}, v{T+4}, v{T+3}
        v_add_u32 v{T+3}, {L_RED}, v{T+3}
        s_lshl_b32 s{sT0}, s{sT3}, 7
        s_add_u32 s{sT0}, s{sT0}, s{sBLK}
        s_add_u32 s{sT0}, s{sT0}, {xoff}""")
        for k in range(nld):
            self(f"s_mov_b64 {sreg(MASKS[k], 2)}, -1")
        self.poll_masked([(f"buffer_load_dwordx4 {vr(8+4*k)}, v{vL16}, {sreg(sWS)}, s{sT1 + k//4} offen offset:{1024*(k%4)} sc1",
                           list(range(8+4*k, 12+4*k))) for k in range(nld)], T)
        n = nld
        while n > 1:
            h = (n + 1) // 2
            self.pkadd(8, 8 + 4 * h, 4 * (n - h))
            n = h
        self(f"""s_nop 1
        v_permlane32_swap_b32 v8, v9
        v_permlane32_swap_b32 v10, v11
        s_nop 0
        v_add_f32 v8, v8, v9
        v_add_f32 v10, v10, v11
        s_nop 1
        v_permlane16_swap_b32 v8, v10
        s_nop 1
        v_add_f32 v8, v8, v10
        s_nop 1
        v_add_f32_dpp v8, v8, v8 row_ror:8 row_mask:0xf bank_mask:0xf
        ds_write_b32 v{T+2}, v8
        ds_read_b128 v[24:27], v{T+3} offset:{L_XK-L_RED}
        s_waitcnt lgkmcnt(0)
        s_barrier""")
        done = self.lab("L_reddone")
        self(f"""s_cmp_lg_u32 s{sWV}, 0
        s_cbranch_scc1 {done}
        ds_read_b128 v[8:11], v{T+3}
        ds_read_b128 v[12:15], v{T+3} offset:128
        ds_read_b128 v[16:19], v{T+3} offset:256
        ds_read_b128 v[20:23], v{T+3} offset:384
        s_waitcnt lgkmcnt(0)""")
        self.pkadd(8, 16, 8)
        self.pkadd(8, 12, 4)
        for r in range(4):
            self.bf16r(8 + r, 8 + r)
        self.pkadd(8, 24, 4)
        if final_possible:
            nf = self.lab("L_notfinal")
            self(f"""s_cmp_eq_u32 s{sPASS}, 0
            s_cbranch_scc1 {nf}
            v_cvt_pk_bf16_f32 v12, v8, v9
            v_cvt_pk_bf16_f32 v13, v10, v11
            v_lshlrev_b32 v{T+1}, 3, v{vLANE}
            s_lshl_b32 s{sT0}, s{sT3}, 6
            s_mov_b64 exec, 0xff
            buffer_store_dwordx2 v[12:13], v{T+1}, {sreg(sOUT)}, s{sT0} offen
            s_mov_b64 exec, -1
            s_branch {done}
            {nf}:""")
        for r in range(4):
            self.bf16r(8 + r, 8 + r)
        self(f"""buffer_store_dwordx4 v[8:11], v{T+4}, {sreg(sWS)}, s{sT0} offen sc1
        ds_write_b128 v{T+3}, v[8:11] offset:{L_XK-L_RED}
        s_waitcnt lgkmcnt(0)
        {done}:""")

    def q_prep(self):
        self(f"""s_mul_i32 s{sT0}, s{sWV}, 768
        s_add_u32 s{sT0}, s{sT0}, {L_PART}
        v_lshrrev_b32 v39, 5, v{vLANE}
        v_lshl_add_u32 v39, v39, 8, s{sT0}
        v_and_b32 v35, 7, v{vLANE}
        v_lshl_add_u32 v39, v35, 5, v39
        v_and_b32 v35, 16, v{vLANE}
        v_add_u32 v39, v39, v35""")

    def q_partial(self):
        g = self
        g.ln()
        g.mkA(32, 36)
        g.mkA(24, 37)
        for j in range(3):
            g(f"v_mfma_f32_16x16x32_bf16 {vr(vACC+4*j)}, v[32:35], {WOG[0][j]}, 0")
        g.mkA(28, 38)
        for j in range(3):
            g(f"v_mfma_f32_16x16x32_bf16 {vr(vACC+4*j)}, v[24:27], {WOG[1][j]}, {vr(vACC+4*j)}")
        q2 = g.lab("L_q2")
        g(f"s_cmp_ge_u32 s{sWV}, 2\ns_cbranch_scc1 {q2}")
        for j in range(3):
            g(f"v_mfma_f32_16x16x32_bf16 {vr(vACC+4*j)}, v[28:31], {WOG[2][j]}, {vr(vACC+4*j)}")
        g(f"{q2}:\ns_nop 7")
        g.parity(3)
        g(f"""s_mov_b32 exec_lo, 0x00ff00ff
        s_mov_b32 exec_hi, 0x00ff00ff
        ds_write_b128 v39, {vr(vACC)}
        s_mov_b32 exec_hi, 0
        ds_write_b128 v39, {vr(vACC+8)} offset:512
        s_mov_b64 exec, -1
        v_add_u32 v32, {L_PART}, v{vL16}
        s_waitcnt lgkmcnt(0)
        s_barrier""")

    def q_publish(self, qp):
        g = self
        for k in range(4):
            g(f"ds_read_b128 {vr(8+4*k)}, v32 offset:{768*k}")
        g(f"s_mul_i32 s{sT1}, s2, 768\ns_add_u32 s{sT1}, s{sT1}, {qp}\ns_mov_b32 exec_hi, 0xffff\ns_waitcnt lgkmcnt(0)")
        g.pkadd(8, 16, 8)
        g.pkadd(8, 12, 4)
        g(f"buffer_store_dwordx4 v[8:11], v{vL16}, {sreg(sWS)}, s{sT1} offen sc1\ns_mov_b64 exec, -1")

    def q_addr(self, qp):
        self(f"""s_mul_i32 s{sT3}, s{sSEGH}, 6144
        s_add_u32 s{sT3}, s{sT3}, {qp}
        s_add_u32 s{sLOOP}, s{sT3}, 3072""")

    def q_loads(self):
        return [(f"buffer_load_dwordx4 {vr(8+4*k)}, v{vL16}, {sreg(sWS)}, s{sT3 if k < 4 else sLOOP} offen offset:{(k%4)*768} sc1",
                 list(range(8+4*k, 12+4*k))) for k in range(8)]

    def q_sum(self):
        g = self
        g.pkadd(8, 24, 16)
        g(f"""s_and_b32 s{sT0}, s{sWV}, 1
        s_mul_i32 s{sT0}, s{sT0}, 384
        s_add_u32 s{sT0}, s{sT0}, {L_QB}
        v_lshl_add_u32 v24, v{vLANE}, 3, s{sT0}""")
        g.pkadd(8, 16, 8)
        g.pkadd(8, 12, 4)
        g("""v_cvt_pk_bf16_f32 v8, v8, v9
        v_cvt_pk_bf16_f32 v9, v10, v11
        ds_write_b64 v24, v[8:9]
        s_mov_b64 exec, -1""")

    def seg_a(self, ps):
        g = self
        pols = [[(g.polx if (ps == 0 and g.xa[3*i+j] == "1") else g.pol) for j in range(3)] for i in range(3)]
        if ps == 0:
            g(f"s_mul_i32 s{sT0}, s{sWV}, 1536\ns_add_u32 s{sT0}, s{sT0}, {L_PART}")
        else:
            g(f"s_mul_i32 s{sT0}, s{sWV}, {NLDS*UB}\ns_add_u32 s{sT0}, s{sT0}, 16")
        sk = g.lab("L_no42")
        g(f"""s_lshl_b32 s{sT1}, s{sNB}, 4
        s_sub_u32 s{sT0}, s{sT0}, s{sT1}
        s_add_u32 s{sT0}, s{sT0}, {42*16}
        v_lshrrev_b32 v{vSC}, 3, v{vLANE}
        v_lshl_add_u32 v{vSC}, v{vSC}, 1, s{sT0}
        v_mov_b32 v{vMX}, 0xff800000
        v_mov_b32 v{vSV}, 0
        s_waitcnt lgkmcnt(0)
        s_cmp_lg_u32 s{sNB}, 42
        s_cbranch_scc1 {sk}""")
        g.qk_store(buf(kbuf(42)), 0)
        g(f"{sk}:")
        for k in range(43, NF):
            g.qk_store(buf(kbuf(k)), 16 * (k - 42))
        o0 = 16 * (NF - 42)
        nit = (NK - 2) // 3

        def kstep(i, kv):
            g("s_waitcnt vmcnt(3)")
            g.issue((i + 2) % 3, kv, sOFF, pols[(i + 2) % 3])
            g(f"s_add_u32 s{sOFF}, s{sOFF}, {STR}")
            g.qk_store(buf(i % 3), o0 + 16 * i)
        top = g.lab("L_kloop")
        g(f"s_mov_b32 s{sLOOP}, {nit}\n.p2align 6\n{top}:")
        for i in range(3):
            kstep(i, 0)
        g(f"""v_add_u32 v{vSC}, 48, v{vSC}
        s_sub_u32 s{sLOOP}, s{sLOOP}, 1
        s_cmp_lg_u32 s{sLOOP}, 0
        s_cbranch_scc1 {top}""")
        for i in range(NK - 3 * nit):
            if i == NK - 3 * nit - 2:
                g(f"s_mov_b32 s{sOFF}, s{sBA}")
            kstep(i, int(i >= NK - 3 * nit - 2))
        g.wavemax(vNEG, vMX)
        g(f"""s_lshl_b32 s{sT1}, s{sNB}, 4
        s_sub_u32 s{sT1}, {42*16 + 48*nit}, s{sT1}
        v_subrev_u32 v{vSC}, s{sT1}, v{vSC}""")
        top = g.lab("L_vloop")
        g(f"s_mov_b32 s{sLOOP}, 27\n.p2align 6\n{top}:")
        for i in range(3):
            g.p_stored(16 * i)
            g("s_waitcnt vmcnt(3)")
            g.issue((NK + i + 2) % 3, 1, sOFF, pols[(NK + i + 2) % 3])
            g(f"s_add_u32 s{sOFF}, s{sOFF}, {STR}")
            g.pv((NK + i) % 3)
        g(f"""v_add_u32 v{vSC}, 48, v{vSC}
        s_sub_u32 s{sLOOP}, s{sLOOP}, 1
        s_cmp_lg_u32 s{sLOOP}, 0
        s_cbranch_scc1 {top}""")

    def build(self):
        T = vT
        g = self
        g("s_cmp_ge_u32 s2, 256\ns_cbranch_scc1 L_end")
        g.stamp(0)
        g(f"""s_load_dwordx2 s[{sK}:{sK+1}], s[0:1], 8
        s_load_dwordx2 s[{sX}:{sX+1}], s[0:1], 0
        s_load_dwordx2 s[{sV}:{sV+1}], s[0:1], 16
        s_load_dwordx2 s[{sWQ}:{sWQ+1}], s[0:1], 24
        s_load_dwordx2 s[{sWO}:{sWO+1}], s[0:1], 32
        s_load_dwordx2 s[{sW1}:{sW1+1}], s[0:1], 48
        s_load_dwordx2 s[{sW2}:{sW2+1}], s[0:1], 56
        s_load_dwordx2 s[{sOUT}:{sOUT+1}], s[0:1], 64
        s_load_dwordx2 s[{sDBG}:{sDBG+1}], s[0:1], 72
        s_load_dwordx2 s[{sWS}:{sWS+1}], s[0:1], 80
        v_lshrrev_b32 v1, 6, v0
        v_and_b32 v{vLANE}, 63, v0
        v_readfirstlane_b32 s{sWV}, v1""")
        for s, n in ((sX, 1280), (sK, KVB), (sV, KVB), (sWQ, 640*6144*2), (sWO, 6144*640*2), (sW1, 640*1536*2),
                     (sW2, 1536*640*2), (sOUT, 1280), (sDBG, 256), (sWS, WS_REC)):
            g(f"s_mov_b32 s{s+2}, {n}\ns_mov_b32 s{s+3}, 0x20000")
        g(f"""s_lshr_b32 s{sHQ}, s2, 3
        s_and_b32 s{sS}, s2, 7
        s_lshr_b32 s{sT0}, s2, 5
        s_lshl_b32 s{sT0}, s{sT0}, 3
        s_add_u32 s{sT0}, s{sT0}, s{sS}
        s_and_b32 s{sT1}, s{sHQ}, 3
        s_mul_i32 s{sT2}, s{sT0}, 43
        s_lshr_b32 s{sT3}, s{sT2}, 8
        s_lshr_b32 s{sT2}, s{sT2}, 7
        s_mul_i32 s{sT4}, s{sT2}, 3
        s_sub_u32 s{sT4}, s{sT0}, s{sT4}""")
        g(f"""s_cmp_eq_u32 s{sT4}, 0
        s_cselect_b32 s{sNB}, 42, 43
        s_mul_i32 s{sBA}, s{sT4}, 85
        s_add_u32 s{sBA}, s{sBA}, s{sNB}
        s_sub_u32 s{sBA}, s{sBA}, 42
        s_lshl_b32 s{sOFF}, s{sT2}, 8
        s_add_u32 s{sBA}, s{sBA}, s{sOFF}
        s_lshl_b32 s{sT4}, s{sT4}, 2
        s_add_u32 s{sT4}, s{sT4}, s{sT1}""")
        g(f"""s_mul_i32 s{sLOOP}, s{sT3}, 6
        s_sub_u32 s{sLOOP}, s{sT0}, s{sLOOP}
        s_mul_i32 s{sBB}, s{sLOOP}, 43
        s_cmp_gt_u32 s{sLOOP}, 0
        s_subb_u32 s{sBB}, s{sBB}, 0
        s_cmp_gt_u32 s{sLOOP}, 3
        s_subb_u32 s{sBB}, s{sBB}, 0
        s_add_u32 s{sT3}, s{sT3}, 22
        s_cmp_ge_u32 s{sT0}, 60
        s_cselect_b32 s{sT3}, 21, s{sT3}
        s_cselect_b32 s{sOFF}, 86, 0
        s_addc_u32 s{sLOOP}, s{sLOOP}, 0
        s_add_u32 s{sBB}, s{sBB}, s{sOFF}
        s_lshl_b32 s{sOFF}, s{sT3}, 8
        s_add_u32 s{sBB}, s{sBB}, s{sOFF}
        s_lshl_b32 s{sLOOP}, s{sLOOP}, 2
        s_add_u32 s{sLOOP}, s{sLOOP}, s{sT1}
        s_bitcmp1_b32 s{sWV}, 0
        s_cselect_b32 s{sSEGH}, s{sT3}, s{sT2}
        s_cselect_b32 s{sSEGP}, s{sLOOP}, s{sT4}
        s_lshl_b32 s{sT1}, s{sT1}, 2
        s_add_u32 s{sT1}, s{sT1}, s{sWV}
        s_lshl_b32 s{sBA}, s{sBA}, 4
        s_lshl_b32 s{sBB}, s{sBB}, 4
        s_add_u32 s{sBA}, s{sBA}, s{sT1}
        s_add_u32 s{sBB}, s{sBB}, s{sT1}
        s_mul_i32 s{sBA}, s{sBA}, {UB}
        s_mul_i32 s{sBB}, s{sBB}, {UB}
        s_mov_b32 s{sOFF}, s{sBB}""")
        g(f"""v_bfe_u32 v{vKO}, v{vLANE}, 1, 3
        v_mul_u32_u24 v{vKO}, 384, v{vKO}
        v_and_b32 v{T}, 1, v{vLANE}
        v_lshl_add_u32 v{vKO}, v{T}, 6, v{vKO}
        v_and_b32 v{T}, 48, v{vLANE}
        v_add_u32 v{vKO}, v{vKO}, v{T}
        s_waitcnt lgkmcnt(0)""")

        def keep(k):
            if k in (42, 43):
                g(f"s_cmp_eq_u32 s{sNB}, {k}\ns_cselect_b32 s{sOFF}, s{sBA}, s{sOFF}")
            if kbuf(k) is None:
                for j in range(3):
                    g(f"""s_add_u32 m0, s{sT4}, {(k-LDS0)*UB + j*1024}
                    s_add_u32 s{sT2}, s{sOFF}, {128*j}
                    buffer_load_dwordx4 v{vKO}, {sreg(sK)}, s{sT2} offen{g.pol} lds""")
                g.op(k, 3)
            else:
                g.issue(kbuf(k), 0, sOFF, g.pol, k)
            g(f"s_add_u32 s{sOFF}, s{sOFF}, {STR}")

        keep(0)
        keep(1)
        g(f"""v_lshlrev_b32 v{vL16}, 4, v{vLANE}
        v_lshrrev_b32 v{vVO}, 3, v{vLANE}
        v_mul_u32_u24 v{vVO}, 384, v{vVO}
        v_and_b32 v{T}, 7, v{vLANE}
        v_lshl_add_u32 v{vVO}, v{T}, 4, v{vVO}
        v_and_b32 v{T+1}, 1, v{vLANE}
        v_lshlrev_b32 v{T+1}, 4, v{T+1}
        v_mov_b32 v{T+2}, 0xffff
        v_lshlrev_b32 v{T+1}, v{T+1}, v{T+2}
        v_lshrrev_b32 v{T}, 1, v{T}""")
        for r in range(4):
            g(f"v_cmp_eq_u32 vcc, {r}, v{T}\ns_nop 1\nv_cndmask_b32 v{vMK+r}, 0, v{T+1}, vcc")
        g(f"""s_mov_b32 s{sPASS}, 0
        s_mov_b32 s{sBLK}, {W_B0}
        s_mul_i32 s{sWB}, s{sWV}, 6144
        s_cmp_eq_u32 s{sWV}, 3
        s_cselect_b32 s{sWB}, 16384, s{sWB}
        s_add_u32 s{sWB}, s{sWB}, {L_W}
        s_mul_i32 s{sT4}, s{sWV}, {NLDS*UB}""")
        g.x_addr("q")
        g(f"""v_lshrrev_b32 v32, 2, v32
        buffer_load_dwordx2 v[20:21], v33, {sreg(sX)}, 0 offen
        buffer_load_dwordx2 v[22:23], v33, {sreg(sX)}, 0 offen offset:512
        buffer_load_dword v24, v32, {sreg(sX)}, 0 offen offset:1024
        s_sub_u32 s{sT0}, s2, {RED0}
        s_lshl_b32 s{sT0}, s{sT0}, 6
        v_lshl_add_u32 v35, v{vLANE}, 1, s{sT0}
        buffer_load_ushort v39, v35, {sreg(sX)}, 0 offen""")
        g.op("x", 4)
        g.ld_wq()
        g(f"""v_mov_b32 v8, -1
        v_mov_b32 v9, -1
        v_mov_b32 v10, -1
        v_mov_b32 v11, -1
        s_lshl_b32 s{sT0}, s2, 2
        s_add_u32 s{sT0}, s{sT0}, s{sWV}
        s_mul_i32 s{sT1}, s{sT0}, 192
        s_mul_i32 s{sT0}, s{sT0}, {NCLR*1024}
        s_add_u32 s{sT0}, s{sT0}, {W_B0}
        s_mov_b64 exec, 0xfff
        buffer_store_dwordx4 v[8:11], v{vL16}, {sreg(sWS)}, s{sT1} offen sc1
        s_mov_b64 exec, -1""")
        for j in range(g.nclr):
            g(f"buffer_store_dwordx4 v[8:11], v{vL16}, {sreg(sWS)}, s{sT0} offen offset:{1024*j} {g.cpol}")
        g.op("clr", 1 + g.nclr)
        KQ1, KB, KG = 4, 16, 19
        for k in range(2, NF):
            g.wait(k - 2)
            keep(k)
            if k == KQ1:
                assert "clr" not in g.q and "w" not in g.q
                for i in range(5):
                    g(f"v_lshlrev_b32 v{8+2*i}, 16, v{20+i}\nv_and_b32 v{9+2*i}, 0xffff0000, v{20+i}")
                g.x_pick("q")
                g(f"""v_lshlrev_b32 v39, 16, v39
                v_lshlrev_b32 v35, 2, v{vLANE}
                v_add_u32 v35, {L_XK}, v35
                s_mov_b32 exec_hi, 0
                ds_write_b32 v35, v39
                s_mov_b64 exec, -1""")
                g.q_prep()
                g.q_partial()
                g.stamp(9)
            if k == KQ1 + 1:
                sk = g.lab("L_nopub")
                g(f"""s_cmp_lg_u32 s{sWV}, 0
                s_cbranch_scc1 {sk}
                s_mov_b32 s{sT0}, 1
                s_lshl_b32 s{sT1}, s{sHQ}, 3
                s_atomic_add s{sT0}, s[{sDBG}:{sDBG+1}], s{sT1}""")
                g.q_publish(W_QP0)
                g(f"{sk}:")
            if k == KQ1 + 3 and not g.noffn:
                sk = g.lab("L_noffn")
                g(f"s_cmp_ge_u32 s2, {NFFN}\ns_cbranch_scc1 {sk}")
                g.ffn_index()
                g.dma_ffn()
                g(f"{sk}:")
            ldb = f"buffer_load_dword v32, v33, {sreg(sDBG)}, 0 offen sc1"
            if k == KB:
                g(f"v_and_b32 v33, 31, v{vLANE}\nv_lshlrev_b32 v33, 3, v33\n{ldb}")
                g.op("bar")
            if k == KG:
                assert "bar" not in g.q
                top, chk, done = g.lab("L_bar"), g.lab("L_barc"), g.lab("L_bard")
                g(f"""s_mov_b32 s{sCNT}, {SPIN}
                s_branch {chk}
                {top}:
                {ldb}
                s_waitcnt vmcnt(0)
                {chk}:
                v_cmp_gt_u32 vcc, 8, v32
                s_cbranch_vccz {done}
                s_sub_u32 s{sCNT}, s{sCNT}, 1
                s_cbranch_scc0 {top}
                {done}:""")
                g.q_addr(W_QP0)
                g("s_mov_b32 exec_hi, 0xffff")
                for ld, _ in g.q_loads():
                    g(ld)
                g("s_mov_b64 exec, -1")
                g.op("q", 8)
            if k == KG + 3:
                assert "q" not in g.q
                g("s_mov_b32 exec_hi, 0xffff")
                g.poll([ld for ld, _ in g.q_loads()], range(8, 40), vTW, pre=True)
                g.q_sum()
        for i in range(2):
            g.wait(NF - 2 + i)
            g.issue(i, 0, sOFF, g.pol, "r")
            g(f"s_add_u32 s{sOFF}, s{sOFF}, {STR}")
        g("s_waitcnt lgkmcnt(0)\ns_barrier")
        g.load_q(0)
        g.init_softmax()
        g.stamp(10)

        g.seg_a(0)
        pb = lambda k: [g.polx if (k in g.l2 or (g.xb[3*(k % 3)+j] == "1" and k > max((0,) + tuple(g.l2)))) else g.pol for j in range(3)]
        R = lambda u: (NK + u) % 3
        for u in (81, 82, 83, 84):
            if u == 83:
                g(f"""s_add_u32 s{sT0}, s{sBB}, {42*STR}
                s_cmp_eq_u32 s{sNB}, 43
                s_cselect_b32 s{sOFF}, s{sT0}, s{sOFF}""")
            if u == 84:
                g(f"s_add_u32 s{sOFF}, s{sBB}, {41*STR}")
            g.p_stored(16 * (u - 81))
            g("s_waitcnt vmcnt(3)")
            g.issue(R(u + 2), 1, sOFF, g.pol)
            g(f"s_add_u32 s{sOFF}, s{sOFF}, {STR}")
            g.pv(R(u))
        g(f"""s_add_u32 s{sOFF}, s{sBB}, {40*STR}
        s_mul_i32 s{sT0}, s{sWV}, {NLDS*UB}
        v_add_u32 v{vLA}, s{sT0}, v{vL16}
        s_mov_b32 s{sT4}, 0
        s_cmp_eq_u32 s{sNB}, 43
        s_cbranch_scc1 L_p1b42""")
        g.p_stored(64)
        g("s_waitcnt vmcnt(3)")
        g.issue(vbslot(40), 1, sOFF, pb(40))
        g.pv(R(85))
        g(f"s_call_b64 s[{sRT2}:{sRT2+1}], L_switch\ns_branch L_p1b41\nL_p1b42:")
        g(f"s_call_b64 s[{sRT2}:{sRT2+1}], L_switch")
        g.qk_online(42)
        g("s_waitcnt vmcnt(3)")
        g.issue(vbslot(40), 1, sOFF, pb(40))
        g.pv(vbslot(42))
        g("L_p1b41:")
        g.q = [41] * 3 + [40] * 3
        for k in range(41, -1, -1):
            g.qk_online(k)
            if k == 0:
                g.ld_wo(1)
                g.ld_wo(2)
            g.wait(k)
            if k == 3:
                g.arrive(0)
            if k == 1:
                g.arrive(1)
                g.ld_wo(0)
            if k >= 2:
                g(f"s_sub_u32 s{sOFF}, s{sOFF}, {STR}")
                g.issue(vbslot(k - 2), 1, sOFF, pb(k - 2), k - 2)
            g.pv(vbslot(k))
        g(f"s_mov_b32 s{sT4}, 1\ns_branch L_passend")

        for i in range(self.pad):
            g("s_nop 0")
        g("L_switch:")
        g.stamp(11)
        g.flush()
        g(f"""v_and_b32 v{vT}, 1, v{vLANE}
        v_lshlrev_b32 v{vT}, 6, v{vT}
        v_and_b32 v{vT+1}, 48, v{vLANE}
        s_xor_b32 s{sT0}, s{sT4}, 1
        s_mul_i32 s{sT0}, s{sT0}, 384
        s_add_u32 s{sT0}, s{sT0}, {L_QB}
        v_add3_u32 v{vT}, v{vT}, v{vT+1}, s{sT0}""")
        for j in range(3):
            g(f"ds_read_b128 {ar(aQ+4*j)}, v{vT} offset:{128*j}")
        g("s_waitcnt lgkmcnt(0)")
        g.init_softmax()
        g(f"s_setpc_b64 s[{sRT2}:{sRT2+1}]")
        g.rescale_sub()

        g("L_pass2:")
        near = [k for k in g.l2 if k > 0]
        far = [k for k in range(1, 42) if k not in near]
        order = [0] + far[:2]
        far = far[2:]
        while near or far:
            order += near[:g.mix[0]] + far[:g.mix[1]]
            near, far = near[g.mix[0]:], far[g.mix[1]:]
        assert order[-2:] == [40, 41]
        where = {0: vbslot(0)}
        g.q = []
        free = [vbslot(1), vbslot(2)]
        nxt = 1

        def fill(depth):
            nonlocal nxt
            while nxt < 42 and free:
                k = order[nxt]
                if k not in g.l2 and len([t for t in set(g.q) if isinstance(t, int) and t not in g.l2]) >= depth:
                    break
                b = max(free)
                free.remove(b)
                where[k] = b
                g(f"s_add_u32 s{sOFF}, s{sBB}, {k*STR}")
                g.issue(b, 1, sOFF, g.pol, k)
                nxt += 1

        fill(2)
        g("s_waitcnt lgkmcnt(0)")
        for i in range(40):
            k = order[i]
            depth = g.burst[min(i, len(g.burst) - 1)] if i < 36 else 2
            g.qk_online(k)
            if kbuf(k) is not None:
                free.append(kbuf(k))
            g.wait(k)
            fill(depth)
            g("s_nop 0")
            g.pv(where[k])
            free.append(where[k])
            if i < 3:
                fill(depth)
            if i == 8:
                assert all(kbuf(t) is not None for t in order[:9])
                g.dump_stamps(2, 0)
        assert nxt == 42 and g.q == [40] * 3 + [41] * 3 and where[40] > 2 and where[41] > 2
        g(f"""s_sub_u32 s{sT0}, {NF}, s{sNB}
        s_mul_i32 s{sT0}, s{sT0}, {STR}
        s_add_u32 s{sT3}, s{sBA}, s{sT0}
        s_mov_b32 s{sT4}, 1
        s_cmp_eq_u32 s{sNB}, 42
        s_cbranch_scc1 L_p2t42""")
        b42 = max(free)
        for tail in ([(40, b42, 1), (41, 0, 0), (42, 1, 0)], [(40, 0, 0), (41, 1, 0)]):
            for k, b, kv in tail:
                g.qk_online(k)
                g("s_waitcnt vmcnt(3)")
                if kv:
                    g(f"s_add_u32 s{sOFF}, s{sBB}, {42*STR}")
                    g.issue(b, 1, sOFF, g.pol)
                else:
                    g.issue(b, 0, sT3, g.pol)
                    g(f"s_add_u32 s{sT3}, s{sT3}, {STR}")
                g.pv(b42 if k == 42 else where[k])
            if len(tail) == 3:
                g("s_branch L_p2a\nL_p2t42:")
        g(f"L_p2a:\ns_mov_b32 s{sOFF}, s{sT3}\ns_call_b64 s[{sRT2}:{sRT2+1}], L_switch")
        g.seg_a(1)
        g.q = [81] * 3 + [82] * 3
        bufs = {81: R(81), 82: R(82), 83: 3, 84: 4, 85: 5}
        todo = {vbslot(2): 0, vbslot(1): 1}
        for u in (81, 82, 83):
            g.p_stored(16 * (u - 81))
            g.wait(u)
            if u == 81:
                g.arrive(0)
            if u == 83:
                g.arrive(1)
            if u < 83:
                g.issue(bufs[u + 2], 1, sOFF, g.pol, u + 2)
                g(f"s_add_u32 s{sOFF}, s{sOFF}, {STR}")
            else:
                sk = g.lab("L_no85")
                g(f"s_cmp_eq_u32 s{sNB}, 43\ns_cbranch_scc1 {sk}")
                g.issue(bufs[85], 1, sOFF, g.pol)
                g(f"{sk}:")
                q85 = len(g.q)
            if R(u - 1) in todo:
                g.ld_wo(todo.pop(R(u - 1)))
            else:
                g.ld_wo(2)
            g.pv(bufs[u])
        assert not todo
        n85 = len(g.q) - q85
        g.p_stored(48)
        g(f"s_cmp_eq_u32 s{sNB}, 43\ns_cbranch_scc1 L_p2e85")
        g.q = g.q[:q85] + [85] * 3 + g.q[q85:]
        g.wait(84)
        g.pv(bufs[84])
        g.p_stored(64)
        g(f"s_waitcnt vmcnt({n85})\ns_nop 0")
        g.pv(bufs[85])
        g("s_branch L_p2e\nL_p2e85:")
        g(f"s_waitcnt vmcnt({len(g.q) - 3})")
        g.pv(bufs[84])
        g(f"L_p2e:\ns_mov_b32 s{sT4}, 0")

        g("L_passend:")
        g.stamp(2)
        g.flush()
        g("s_waitcnt lgkmcnt(0)\ns_barrier")
        aj = g.lab("L_ajoin")
        g(f"""s_cmp_gt_u32 s{sWV}, 1
        s_cbranch_scc1 {aj}
        s_lshl_b32 s{sT0}, s{sWV}, 5
        s_add_u32 s{sT0}, s{sT0}, {L_ML}
        v_mov_b32 v36, s{sT0}
        s_mul_i32 s{sT0}, s{sWV}, 768
        s_add_u32 s{sT0}, s{sT0}, {L_PART}
        ds_read_b128 v[32:35], v36
        ds_read_b128 v[36:39], v36 offset:16
        v_lshl_add_u32 v30, v{vLANE}, 2, s{sT0}""")
        offs = [6 * w + j for w in range(4) for j in range(3)]
        for k in range(6):
            g(f"ds_read2st64_b32 v[{8+2*k}:{9+2*k}], v30 offset0:{offs[2*k]} offset1:{offs[2*k+1]}")
        g(f"""s_mul_i32 s{sT0}, s{sSEGH}, {8*3072}
        s_lshl_b32 s{sT1}, s{sSEGP}, 7
        s_add_u32 s{sT0}, s{sT0}, s{sT1}
        s_add_u32 s{sT0}, s{sT0}, s{sBLK}
        v_lshrrev_b32 v20, 3, v{vLANE}
        v_mul_u32_u24 v20, 3072, v20
        v_and_b32 v21, 7, v{vLANE}
        v_lshl_add_u32 v20, v21, 4, v20
        v_and_b32 v21, 1, v{vLANE}
        v_cmp_eq_u32 vcc, 1, v21
        s_waitcnt lgkmcnt(0)
        v_max3_f32 v21, v32, v34, v36
        v_max_f32 v21, v21, v38
        v_sub_f32 v32, v32, v21
        v_sub_f32 v34, v34, v21
        v_sub_f32 v36, v36, v21
        v_sub_f32 v38, v38, v21
        v_exp_f32 v32, v32
        v_exp_f32 v34, v34
        v_exp_f32 v36, v36
        v_exp_f32 v38, v38
        v_mul_f32 v33, v33, v32""")
        for j in range(3):
            g(f"v_mul_f32 v{8+j}, v{8+j}, v32")
        for w in range(1, 4):
            g(f"v_fmac_f32 v33, v{33+2*w}, v{32+2*w}")
            for j in range(3):
                g(f"v_fmac_f32 v{8+j}, v{8+3*w+j}, v{32+2*w}")
        g(f"""v_cndmask_b32 v11, v21, v33, vcc
        buffer_store_dwordx4 v[8:11], v20, {sreg(sWS)}, s{sT0} offen offset:{B_AP} sc1
        {aj}:""")
        g.stamp(3)

        def stage_wo(nl):
            g.y_addr(B_Y1, 256, 2)
            g(f"""v_and_b32 v36, 7, v{vLANE}
            v_lshlrev_b32 v36, 7, v36
            v_lshrrev_b32 v37, 3, v{vLANE}
            v_lshl_add_u32 v36, v37, 4, v36
            s_mul_i32 s{sT0}, s2, 3072
            s_add_u32 s{sT0}, s{sT0}, s{sBLK}
            s_mov_b64 {sreg(sMK, 2)}, -1
            s_cmp_lt_u32 s{sHQ}, 21
            s_cselect_b32 s{sMK+2}, 0x0f0f0f0f, -1
            s_cselect_b32 s{sMK+4}, 0, -1
            s_cmp_eq_u32 s{sHQ}, 21
            s_cselect_b32 s{sMK+4}, 0x0f0f0f0f, s{sMK+4}
            s_mov_b32 s{sMK+3}, s{sMK+2}
            s_mov_b32 s{sMK+5}, s{sMK+4}
            v_and_b32 v37, 8, v{vLANE}
            v_cmp_eq_u32 vcc, 0, v37
            v_mov_b32 v37, 0xff800000""")
            for r in (12, 13, 14, 16, 17, 18):
                g(f"v_mov_b32 v{r}, 0")
            g("v_cndmask_b32 v15, 0, v37, vcc\nv_cndmask_b32 v19, 0, v37, vcc")
            g.poll_masked([(f"buffer_load_dwordx4 {vr(8+4*k)}, v36, {sreg(sWS)}, s{sT0} offen offset:{B_AP + 1024*k} sc1",
                            list(range(8+4*k, 12+4*k))) for k in range(3)], 37)
            g.stamp(4)
            dp = ("quad_perm:[1,0,3,2]", "quad_perm:[2,3,0,1]", "row_half_mirror")
            for k in range(3):
                g(f"v_mov_b32 v{32+k}, v{11+4*k}")
            for k in range(3):
                g(f"v_mov_b32_dpp v{32+k}, v{11+4*k} row_ror:8 row_mask:0xf bank_mask:0xc")
            for k in range(3):
                g(f"v_mov_b32_dpp v{11+4*k}, v{11+4*k} row_ror:8 row_mask:0xf bank_mask:0x3")
            g("v_max3_f32 v35, v32, v33, v34")
            for d in dp:
                g(f"s_nop 1\nv_max_f32_dpp v35, v35, v35 {d} row_mask:0xf bank_mask:0xf")
            for k in range(3):
                g(f"v_sub_f32 v{32+k}, v{32+k}, v35")
            for k in range(3):
                g(f"v_exp_f32 v{32+k}, v{32+k}")
            for r in range(4):
                g(f"v_mul_f32 v{8+r}, v{8+r}, v32")
            for k in (1, 2):
                for r in range(4):
                    g(f"v_fmac_f32 v{8+r}, v{8+4*k+r}, v{32+k}")
            for d in dp:
                for r in range(4):
                    g(f"v_add_f32_dpp v{8+r}, v{8+r}, v{8+r} {d} row_mask:0xf bank_mask:0xf")
            g("v_rcp_f32 v11, v11\ns_nop 0")
            for j in range(3):
                g(f"v_mul_f32 v{8+j}, v{8+j}, v11\nv_cvt_pk_bf16_f32 v{36+j}, v{8+j}, v{8+j}")
            g.mkA(32, 36)
            g.mkA(24, 37)
            for i in range(nl):
                g(f"v_mfma_f32_16x16x32_bf16 {vr(vACC+4*i)}, v[32:35], {WOG[0][i]}, 0")
            g.mkA(28, 38)
            for i in range(nl):
                g(f"v_mfma_f32_16x16x32_bf16 {vr(vACC+4*i)}, v[24:27], {WOG[1][i]}, {vr(vACC+4*i)}")
            for i in range(nl):
                g(f"v_mfma_f32_16x16x32_bf16 {vr(vACC+4*i)}, v[28:31], {WOG[2][i]}, {vr(vACC+4*i)}")
            g.publish_y(nl)
        g.by_nl(stage_wo)
        g.stamp(5)
        g(f"""s_barrier
        s_sub_u32 s{sT0}, s2, {RED0}
        s_cmp_lt_u32 s{sT0}, {NRED}
        s_cbranch_scc1 L_red
        s_cmp_lg_u32 s{sPASS}, 0
        s_cbranch_scc1 L_nowq""")
        g.ld_wq()
        g(f"""L_nowq:
        s_cmp_ge_u32 s2, {NFFN}
        s_cbranch_scc1 L_notffn""")

        g.ffn_index()
        g.gatewait()

        def stage_ffn(nl):
            g(f"v_add_u32 v39, s{sWB}, v{vL16}")
            for i in range(nl):
                g(f"ds_read_b128 {vr(20+4*i)}, v39 offset:{i*1024}")
            g.y_addr(B_Y2, NFFN, sT3)
            g.x_gather(B_X1, "ffn")
            g.stamp(6)
            g.ln()
            g("s_waitcnt lgkmcnt(0)")
            for i in range(nl):
                g(f"v_and_b32 v32, 0xffff, v{36+i}\nv_and_b32 v33, 0xffff0000, v{36+i}")
                for e in range(8):
                    c = f"v{8+e}" if i else "0"
                    g(f"v_dot2_f32_bf16 v{8+e}, v{20+4*i+e//2}, v{32+(e&1)}, {c}")
                if i + 1 < nl:
                    g("s_nop 2")
            g(f"v_add_u32 v34, s{sWB}, v{vL16}")
            for i in range(nl):
                g(f"ds_read_b128 {vr(20+4*i)}, v34 offset:{(nl+i)*1024}")
            for e in range(4):
                g(f"v_permlane32_swap_b32 v{8+e}, v{12+e}")
            for e in range(4):
                g(f"v_add_f32 v{8+e}, v{8+e}, v{12+e}")
            g(f"""v_lshrrev_b32 v32, 3, v{vLANE}
            v_lshlrev_b32 v32, 4, v32
            v_permlane16_swap_b32 v8, v10
            v_permlane16_swap_b32 v9, v11
            v_add_u32 v32, {L_HP}, v32
            v_add_f32 v8, v8, v10
            v_add_f32 v9, v9, v11
            s_lshl_b32 s{sT0}, s{sWV}, 2
            v_add_u32 v33, s{sT0}, v32
            v_add_f32_dpp v10, v8, v8 row_ror:8 row_mask:0xf bank_mask:0x3
            s_nop 1
            v_add_f32_dpp v10, v9, v9 row_ror:8 row_mask:0xf bank_mask:0xc
            s_nop 1
            v_add_f32_dpp v10, v10, v10 quad_perm:[1,0,3,2] row_mask:0xf bank_mask:0xf
            s_nop 1
            v_add_f32_dpp v10, v10, v10 quad_perm:[2,3,0,1] row_mask:0xf bank_mask:0xf
            s_nop 1
            v_add_f32_dpp v10, v10, v10 row_half_mirror row_mask:0xf bank_mask:0xf
            ds_write_b32 v33, v10
            s_waitcnt lgkmcnt(0)
            s_barrier
            ds_read_b128 v[8:11], v32
            s_waitcnt lgkmcnt(0)
            v_add_f32 v8, v8, v9
            v_add_f32 v10, v10, v11
            v_add_f32 v8, v8, v10""")
            g.bf16r(8, 8)
            g(f"""v_mul_f32 v9, {NLOG2E:#x}, v8
            v_exp_f32 v9, v9
            s_nop 0
            v_add_f32 v9, 1.0, v9
            v_rcp_f32 v9, v9
            s_nop 0
            v_mul_f32 v8, v8, v9
            v_cvt_pk_bf16_f32 v36, v8, v8""")
            g.mkA(32, 36)
            g("s_nop 1")
            for i in range(nl):
                g(f"v_mfma_f32_16x16x32_bf16 {vr(vACC+4*i)}, v[32:35], {vr(20+4*i)}, 0")
            g.publish_y(nl)
        g.by_nl(stage_ffn)
        g.stamp(7)
        g("L_notffn:")
        g(f"s_cmp_lg_u32 s{sPASS}, 0\ns_cbranch_scc1 L_fin")

        g("L_getx2:")
        g.q_prep()
        g.x_gather(B_X2, "q")
        g.stamp(8)
        g.dump_stamps(1)
        g.q_partial()
        g.stamp(9)
        qj, q1 = g.lab("L_qjoin"), g.lab("L_q1")
        g(f"s_cmp_lg_u32 s{sWV}, 0\ns_cbranch_scc1 {q1}")
        g.q_publish(W_B0 + B_QP)
        g.stamp(0)
        g(f"s_branch {qj}\n{q1}:\ns_cmp_eq_u32 s{sWV}, 3\ns_cbranch_scc1 {qj}")
        g.q_addr(W_B0 + B_QP)
        for k in range(8):
            g(f"s_mov_b32 s{MASKS[k]}, -1\ns_mov_b32 s{MASKS[k]+1}, 0xffff")
        if g.qd:
            g(f"s_sleep {g.qd}")
        g.poll_masked(g.q_loads(), vTW, live=0xffff)
        g.stamp(1)
        g.q_sum()
        g(f"{qj}:")
        g("s_nop 1")
        g.init_softmax()
        g(f"""s_mul_i32 s{sT0}, s{sWV}, {NLDS*UB}
        v_add_u32 v{vLA}, s{sT0}, v{vL16}
        s_mov_b32 s{sBLK}, {W_B1}
        s_mov_b32 s{sPASS}, 1
        s_waitcnt lgkmcnt(0)
        s_barrier""")
        g.load_q(1)
        g.stamp(10)
        g("s_branch L_pass2")

        g("L_red:")
        nq = g.lab("L_nowq")
        g.gatewait()
        g.reducer(B_Y1, 256, False, B_X1, vTW)
        g.stamp(6)
        g(f"s_barrier\ns_cmp_lg_u32 s{sPASS}, 0\ns_cbranch_scc1 {nq}")
        g.ld_wq()
        g(f"{nq}:")
        g.reducer(B_Y2, NFFN, True, B_X2, 32)
        g.stamp(7)
        g(f"s_cmp_eq_u32 s{sPASS}, 0\ns_cbranch_scc1 L_getx2")
        g("L_fin:")
        g("s_waitcnt vmcnt(0)")
        g.stamp(8)
        g.dump_stamps()
        g("s_waitcnt vmcnt(0)")
        g("L_end:\ns_endpgm")

        out = HEADER + f"; @launch grid=(256,1,1) block=(256,1,1) lds={LDS_BYTES}\n"
        out += f'.amdgcn_target "amdgcn-amd-amdhsa--gfx950"\n.text\n.globl {KN}\n.p2align 8\n.type {KN},@function\n{KN}:\n'
        out += "\n".join(self.L) + "\n"
        out += f""".section .rodata,"a"
.p2align 6
.amdhsa_kernel {KN}
  .amdhsa_next_free_vgpr 512
  .amdhsa_next_free_sgpr 102
  .amdhsa_accum_offset 256
  .amdhsa_group_segment_fixed_size 0
  .amdhsa_kernarg_size 88
  .amdhsa_user_sgpr_count 2
  .amdhsa_user_sgpr_kernarg_segment_ptr 1
  .amdhsa_system_sgpr_workgroup_id_x 1
.end_amdhsa_kernel
"""
        return out


def parse(spec):
    kw = {}
    if spec:
        for kv in spec.split(","):
            k, v = kv.split("=")
            if k not in ("xa", "xb"):
                try:
                    v = ast.literal_eval(v.replace(":", ","))
                except Exception:
                    pass
            if "pol" in k:
                v = "" if v == "def" else v.replace("+", " ")
            kw[k] = v
    return kw


if __name__ == "__main__":
    open(sys.argv[1], "w").write(Gen(**parse(sys.argv[2] if len(sys.argv) > 2 else "")).build())
```
